```python
import torch

def _softmax(x, axis=-1):
    return torch.softmax(x, dim=axis)
def _gelu(x):
    return torch.nn.functional.gelu(x, approximate="tanh")
def _silu(x):
    return torch.nn.functional.silu(x)
def _sigmoid(x):
    return torch.sigmoid(x)
def _layernorm(x, axis=-1, eps=1e-5):
    m = x.mean(dim=axis, keepdim=True)
    v = x.var(dim=axis, keepdim=True, unbiased=False)
    return (x - m) / torch.sqrt(v + eps)
def _scatter_add(tgt, idx, src, axis=0):
    return tgt.clone().index_add_(axis, idx, src)
def _segment_sum(src, seg, n):
    out = torch.zeros((n,) + src.shape[1:], dtype=src.dtype)
    return out.index_add_(0, seg, src)
def _pad(x, pw):
    flat = tuple(v for pair in reversed(pw) for v in pair)
    return torch.nn.functional.pad(x, flat)

kernel_name = 'concat_heads__linear_attn_block__linear_kernel_hedgehog__prompt'

def setup_inputs():

    _w = (lambda a: (lambda t: t.to(torch.bfloat16) if t.is_floating_point() else t)(torch.as_tensor(a)))
    def _A_setup():
        B, S, D = 1, 2048, 448
        return {
            "x": _w((lambda *s: torch.randn(*s, dtype=torch.bfloat16) * 0.05)(B, S, D)),
            "wqkv": _w((lambda *s: torch.randn(*s, dtype=torch.bfloat16) * 0.8)(D, 3 * D)),
            "wo": _w((lambda *s: torch.randn(*s, dtype=torch.bfloat16) * 0.4)(D, D)),
        }
    _A_in = _A_setup()

    def _B_setup():
        B, S, D, H = 1, 2048, 448, 16
        Dh = D // H
        return {
            "x": _w((lambda *s: torch.randn(*s, dtype=torch.bfloat16) * 0.4)(B, S, D)),
            "wqkv": _w((lambda *s: torch.randn(*s, dtype=torch.bfloat16) * 0.4)(D, 3 * D)),
            "w_phi": _w((lambda *s: torch.randn(*s, dtype=torch.bfloat16) * 0.4)(H, Dh, Dh) * (Dh ** -0.5)),
            "wo": _w((lambda *s: torch.randn(*s, dtype=torch.bfloat16) * 0.05)(D, D)),
        }
    _B_in = _B_setup()

    return {
        "A_x": _A_in["x"],
        "A_wqkv": _A_in["wqkv"],
        "A_wo": _A_in["wo"],
        "B_x": _B_in["x"],
        "B_wqkv": _B_in["wqkv"],
        "B_w_phi": _B_in["w_phi"],
        "B_wo": _B_in["wo"],
    }

def reference(A_x, A_wqkv, A_wo, B_x, B_wqkv, B_w_phi, B_wo):
    def _A_ref(x, wqkv, wo):
        B, S, D = x.shape
        H = 16; Dh = D // H
        qkv = (lambda x, *d: x.permute(*d))((x @ wqkv).reshape(B, S, 3, H, Dh), 2, 0, 3, 1, 4)
        q, k, v = qkv[0], qkv[1], qkv[2]
        phi = lambda t: torch.where(t > 0, t + 1, torch.exp(t)) + 1e-6
        pq, pk = phi(q), phi(k)
        kv = torch.einsum("bhsd,bhse->bhde", pk, v)
        z = torch.einsum("bhsd->bhd", pk)
        num = torch.einsum("bhqd,bhde->bhqe", pq, kv)
        den = torch.einsum("bhqd,bhd->bhq", pq, z)[..., None] + 1e-6
        o = num / den
        return (lambda x, *d: x.permute(*d))(o, 0, 2, 1, 3).reshape(B, S, D) @ wo

    def _B_ref(x, wqkv, w_phi, wo):
        B, S, D = x.shape
        H = 16; Dh = D // H
        qkv = (lambda x, *d: x.permute(*d))((x @ wqkv).reshape(B, S, 3, H, Dh), 2, 0, 3, 1, 4)
        q, k, v = qkv[0], qkv[1], qkv[2]
        pq = torch.einsum("bhsd,hdf->bhsf", q, w_phi)
        pk = torch.einsum("bhsd,hdf->bhsf", k, w_phi)
        phi_q = torch.concatenate([_softmax(pq, axis=-1), _softmax(-pq, axis=-1)], axis=-1)
        phi_k = torch.concatenate([_softmax(pk, axis=-1), _softmax(-pk, axis=-1)], axis=-1)
        kv = torch.einsum("bhsf,bhsd->bhfd", phi_k, v)
        z  = torch.einsum("bhsf->bhf", phi_k)
        num = torch.einsum("bhqf,bhfd->bhqd", phi_q, kv)
        den = torch.einsum("bhqf,bhf->bhq", phi_q, z)[..., None] + 1e-6
        o = num / den
        return (lambda x, *d: x.permute(*d))(o, 0, 2, 1, 3).reshape(B, S, D) @ wo

    a = _A_ref(A_x, A_wqkv, A_wo)
    b = _B_ref(B_x, B_wqkv, B_w_phi, B_wo)
    return torch.concatenate([a, b], axis=-1)
```

```python
import re

TRANS = ("v_exp_f32", "v_log_f32", "v_rcp_f32", "v_rsq_f32", "v_sqrt_f32", "v_sin_f32", "v_cos_f32")

def regs_of(tok):
    tok = tok.strip()
    tok = tok.lstrip('-')
    m = re.fullmatch(r"abs\((.*)\)|\|(.*)\|", tok)
    if m: tok = m.group(1) or m.group(2)
    m = re.fullmatch(r"([vsa])(\d+)", tok)
    if m: return {(m.group(1), int(m.group(2)))}
    m = re.fullmatch(r"([vsa])\[(\d+):(\d+)\]", tok)
    if m: return {(m.group(1), i) for i in range(int(m.group(2)), int(m.group(3)) + 1)}
    if tok == "vcc": return {('s', 'vcc')}
    if tok in ("vcc_lo", "vcc_hi"): return {('s', 'vcc')}
    if tok == "m0": return {('s', 'm0')}
    if tok == "exec": return {('s', 'exec')}
    return set()

class Ins:
    def __init__(self, text):
        self.text = text
        t = text.split(';')[0].strip()
        self.is_label = t.endswith(':')
        self.op = t.split()[0] if t and not self.is_label else ''
        rest = t[len(self.op):].strip() if not self.is_label else ''
        ops = [o.strip() for o in rest.split(',')] if rest else []
        self.mods = ''
        if ops:
            parts = ops[-1].split()
            ops[-1] = parts[0] if parts else ''
            self.mods = ' '.join(parts[1:])
        self.ops = ops
        op = self.op
        self.kind = 'other'
        self.w = set(); self.r = set()
        self.A = self.B = self.C = set()
        R = [regs_of(o) for o in ops]
        def U(l):
            s = set()
            for x in l: s |= x
            return s
        if op.startswith('v_mfma'):
            self.kind = 'mfma'
            self.w = R[0]; self.A, self.B, self.C = R[1], R[2], R[3]
            self.r = R[1] | R[2] | R[3]
            self.passes = 8 if '32x32' in op else 4
        elif op.startswith('v_'):
            self.kind = 'valu'
            if op.startswith('v_permlane') and 'swap' in op:
                self.w = R[0] | R[1]; self.r = R[0] | R[1]
            elif op.startswith('v_cmp'):
                self.w = R[0]; self.r = U(R[1:])
            elif op in ('v_add_co_u32', 'v_sub_co_u32'):
                self.w = R[0] | R[1]; self.r = U(R[2:])
            elif op.startswith('v_fmac') or op.startswith('v_pk_fmac') or op.startswith('v_writelane'):
                self.w = R[0]; self.r = U(R)
            else:
                self.w = R[0]; self.r = U(R[1:])
            if op.startswith('v_cndmask') and len(ops) == 3: self.r |= {('s', 'vcc')}
        elif op.startswith('ds_'):
            self.kind = 'ds'
            if op.startswith('ds_read') or op.startswith('ds_bperm') or op.startswith('ds_swizzle'):
                self.w = R[0]; self.r = U(R[1:])
            else:
                self.r = U(R)
        elif op.startswith('buffer_') or op.startswith('global_'):
            self.kind = 'vmem'
            islds = 'lds' in self.mods.split()
            self.islds = islds
            if 'load' in op and not islds:
                self.w = R[0]; self.r = U(R[1:])
            elif 'atomic' in op and 'sc0' in self.mods.split():
                self.w = R[0]; self.r = U(R)
            else:
                self.r = U(R)
            if islds: self.r |= {('s', 'm0')}
            self.widestore = ('store' in op) and (op.endswith('x4') or op.endswith('x3'))
            self.data = R[0] if 'store' in op else set()
        elif op.startswith('s_'):
            self.kind = 'salu'
            if op.startswith('s_cmp') or op.startswith('s_cbranch') or op in ('s_branch', 's_barrier', 's_waitcnt', 's_nop', 's_endpgm', 's_setprio', 's_sleep'):
                self.r = U(R)
            else:
                self.w = R[0] if R else set(); self.r = U(R[1:])
        self.states = 1
        if op == 's_nop': self.states = int(ops[0], 0) + 1
        if self.is_label or not op: self.states = 0

def need(p, c):
    n = 0
    pv = {x for x in p.w if x[0] in 'va'}
    ps = {x for x in p.w if x[0] == 's'}
    if p.kind == 'valu':
        if c.kind == 'mfma' and pv & c.r: n = max(n, 2)
        if c.kind == 'valu':
            if c.op.startswith('v_permlane') and pv & c.r: n = max(n, 2)
            if ('dpp' in c.mods or 'row_' in c.mods or 'quad_perm' in c.mods) and pv & c.r: n = max(n, 2)
            if c.op.startswith(('v_readlane', 'v_readfirstlane')) and pv & c.r: n = max(n, 1)
            if p.op.replace('_e64', '').replace('_e32', '') in TRANS and pv & (c.r | c.w): n = max(n, 1)
            if ps & c.r: n = max(n, 4 if c.op.startswith(('v_readlane', 'v_writelane')) else 2)
            if ('sdwa' in p.op or 'dst_sel' in p.mods or 'op_sel' in p.mods) and not p.op.startswith('v_pk') and pv & (c.r | c.w): n = max(n, 1)
        if c.kind == 'vmem' and ps & c.r: n = max(n, 5)
        if c.kind == 'salu' and ps & c.r: n = max(n, 1)
    if p.kind == 'mfma':
        big = p.passes + 4
        ovl = p.passes + 2
        if c.kind == 'mfma':
            if p.w & (c.A | c.B): n = max(n, big)
            if p.w & c.C and not (c.C == p.w and c.passes == p.passes): n = max(n, ovl)
            if p.w & c.w and not (c.C == p.w and c.w == p.w and c.passes == p.passes): n = max(n, ovl)
        elif c.kind in ('valu', 'ds', 'vmem'):
            if p.w & (c.r | c.w): n = max(n, big)
            if c.kind == 'valu' and p.C & c.w: n = max(n, p.passes - 1)
    if p.kind == 'salu':
        if ('s', 'm0') in p.w and c.kind == 'vmem' and getattr(c, 'islds', False): n = max(n, 1)
    if p.kind == 'vmem' and p.widestore:
        if c.kind == 'valu' and p.data & c.w: n = max(n, 2)
        elif c.kind in ('ds', 'vmem', 'mfma') and p.data & c.w: n = max(n, 1)
    return n

class Asm:
    def __init__(self):
        self.lines = []
    def __call__(self, text):
        for l in text.split('\n'):
            l = l.strip()
            if l: self.lines.append(l)
    def finish(self):
        out = []; hist = []
        nnop = 0
        for l in self.lines:
            if l.startswith(';') or l.startswith('.'):
                out.append(l); continue
            c = Ins(l)
            if c.is_label:
                out.append(l); continue
            dist = 0; req = 0
            for p in reversed(hist):
                if dist >= 20: break
                k = need(p, c) - dist
                if k > req: req = k
                dist += p.states
            while req > 0:
                k = min(req, 16)
                nop = Ins(f"s_nop {k-1}")
                out.append("    " + nop.text); hist.append(nop); req -= k; nnop += 1
            out.append("    " + l); hist.append(c)
        self.nnop = nnop
        return "\n".join(out) + "\n"
```

```python
import sys
from asmdsl import Asm

NAME = "concat_heads__linear_attn_block__linear_kernel_hedgehog__prompt"
KN = NAME + "_kernel"

PART = 28672
R1 = 0
R2 = 2 * PART
R3 = 3 * PART
R4 = R3 + 65536
WPHI = R4
KVT = R4 + 2048
LDS_BYTES = 163840
OUTP = 240

E_OFF = 0x0
X_OFF = 0x10000
P_OFF = 0x100000
O_OFF = 0x400000
S_OFF = 0x1000000

sX, sW, sWO, sWS, sOUT, sPH = 8, 12, 16, 20, 24, 28
sWV, sH, sRB, sROT = 32, 33, 34, 35
sTAG, sTAGHI = 56, 57
sXB = 58
sWB = 59
sWM = 60
sXM = 61
sCI = 62
sCR = 63
sT0, sT1, sT2, sT3 = 64, 65, 66, 67
sPB = 68
sOB = 69
sUP = 70
sRETRY = 72
sC = 73
sLOG = 74
sSV = 76
sST = 80

vL = 1
vXA = 2
vWA = 6
vXR = 7
vWR0 = 11
vWR = 12
vL16 = 13
vE = 14
vT = 16
vWF = 48
vK = 64; vV = 80; vQ = 96
vU = 112
vXF = 128

LOG2E = 0x3fb8aa3b
EPS = 0x358637bd

def vr(b, n): return f"v[{b}:{b+n-1}]"

class G:
    def __init__(self, stamps=False, fast=False):
        self.a = Asm(); self.stamps = stamps; self.ns = 0; self.fast = fast
    def stamp(self):
        if not self.stamps: return
        a = self.a
        a(f"s_memrealtime s[{sSV}:{sSV+1}]\ns_waitcnt lgkmcnt(0)\ns_mov_b32 s{sST+self.ns}, s{sSV}")
        self.ns += 1

    def prologue(self):
        a = self.a
        if self.stamps: a(f"s_memrealtime s[{sST}:{sST+1}]")
        a("s_cmp_ge_u32 s2, 256\ns_cbranch_scc1 L_end")
        a("s_load_dwordx16 s[36:51], s[0:1], 0")
        a("s_load_dwordx4 s[52:55], s[0:1], 64")
        a(f"v_lshrrev_b32 v{vT}, 6, v0")
        a(f"v_and_b32 v{vL}, 63, v0")
        a(f"v_readfirstlane_b32 s{sWV}, v{vT}")
        a(f"s_lshr_b32 s{sT0}, s2, 3")
        a(f"s_and_b32 s{sH}, s{sT0}, 15")
        a(f"s_and_b32 s{sT1}, s2, 3\ns_lshl_b32 s{sT1}, s{sT1}, 1\ns_lshr_b32 s{sT2}, s{sT0}, 4\ns_add_u32 s{sRB}, s{sT1}, s{sT2}")
        a(f"s_mul_i32 s{sT1}, s{sT0}, 37\ns_lshr_b32 s{sT1}, s{sT1}, 8\ns_mul_i32 s{sT1}, s{sT1}, 7\ns_sub_u32 s{sROT}, s{sT0}, s{sT1}")
        a(f"v_lshrrev_b32 v{vT}, 3, v{vL}")
        a(f"v_mul_u32_u24 v{vT}, 896, v{vT}")
        a(f"v_and_b32 v{vT+1}, 7, v{vL}\nv_lshrrev_b32 v{vT+2}, 4, v{vL}\nv_xor_b32 v{vT+1}, v{vT+1}, v{vT+2}")
        a(f"v_lshl_add_u32 v{vXA}, v{vT+1}, 4, v{vT}")
        a(f"v_xor_b32 v{vT+1}, 4, v{vT+1}")
        a(f"v_lshl_add_u32 v{vXA+1}, v{vT+1}, 4, v{vT}")
        a(f"v_add_u32 v{vXA+2}, {2*6144}, v{vXA}")
        a(f"v_add_u32 v{vXA+3}, {3*6144}, v{vXA+1}")
        a(f"v_add_u32 v{vXA+1}, 6144, v{vXA+1}")
        a(f"v_lshrrev_b32 v{vT}, 2, v{vL}\nv_mul_u32_u24 v{vT}, 2688, v{vT}\nv_and_b32 v{vT+1}, 3, v{vL}")
        a(f"v_lshl_add_u32 v{vWA}, v{vT+1}, 4, v{vT}")
        a(f"s_mul_i32 s{sT1}, s{sH}, 56\ns_and_b32 s{sT1}, s{sT1}, 0xfffffff0")
        a(f"v_add_u32 v{vWA}, s{sT1}, v{vWA}")
        a(f"s_lshl_b32 s{sT1}, s{sRB}, 3\ns_add_u32 s{sT1}, s{sT1}, s{sWV}\ns_mul_i32 s{sXB}, s{sT1}, {32*896}")
        a(f"s_lshr_b32 s{sT1}, s{sWV}, 2\ns_and_b32 s{sT2}, s{sWV}, 3")
        a(f"s_mul_i32 s{sWB}, s{sT1}, 896\ns_add_u32 s{sWB}, s{sWB}, 896\ns_mul_i32 s{sT3}, s{sT2}, {16*2688}\ns_add_u32 s{sWB}, s{sWB}, s{sT3}")
        a(f"s_mul_i32 s{sWM}, s{sT1}, {PART}\ns_lshl_b32 s{sT3}, s{sT2}, 10\ns_add_u32 s{sWM}, s{sWM}, s{sT3}")
        a(f"s_lshl_b32 s{sXM}, s{sWV}, 13\ns_add_u32 s{sXM}, s{sXM}, {R3}")
        a(f"s_mov_b32 s{sCI}, s{sROT}\ns_mov_b32 s{sCR}, s{sROT}")
        a(f"s_mov_b32 s{sX+2}, 1835008\ns_mov_b32 s{sX+3}, 0x20000")
        a(f"s_mov_b32 s{sW+2}, 1204224\ns_mov_b32 s{sW+3}, 0x20000")
        a(f"s_mov_b32 s{sWS+2}, 0x10000000\ns_mov_b32 s{sWS+3}, 0x20000")
        a("s_bitcmp1_b32 s2, 2")
        a("s_cbranch_scc1 L_A")

    def issue_chunk(self, slot):
        a = self.a
        a(f"s_lshl_b32 s{sT0}, s{sCI}, 7\ns_add_u32 s{sT0}, s{sT0}, s{sXB}")
        a(f"s_mul_i32 s{sT1}, s{sCI}, {64*2688}\ns_add_u32 s{sT1}, s{sT1}, s{sWB}")
        a(f"s_lshl_b32 s{sT2}, s{sCI}, 12\ns_add_u32 m0, s{sT2}, s{sWM}")
        a(f"s_add_u32 s{sCI}, s{sCI}, 1")
        a(f"buffer_load_dwordx4 v{vWA}, s[{sW}:{sW+3}], s{sT1} offen lds")
        a(f"s_add_u32 m0, s{sXM}, {slot*4096}")
        a(f"s_cmp_eq_u32 s{sCI}, 7")
        for i in range(4):
            a(f"buffer_load_dwordx4 v{vXA+i}, s[{sX}:{sX+3}], s{sT0} offen offset:{i*1024} lds")
        a(f"s_cselect_b32 s{sCI}, 0, s{sCI}")

    def issue_wq(self, m):
        a = self.a
        a(f"s_add_u32 s{sT0}, s{sWV}, {8*m}")
        if m == 3: a(f"s_cmp_ge_u32 s{sT0}, 28\ns_cbranch_scc1 L_wq_skip{self.br}")
        a(f"s_mul_i32 s{sT1}, s{sT0}, {16*2688}")
        a(f"s_lshl_b32 s{sT0}, s{sT0}, 10\ns_add_u32 m0, s{sT0}, {R2}\ns_nop 0")
        a(f"buffer_load_dwordx4 v{vWA}, s[{sW}:{sW+3}], s{sT1} offen lds")
        if m == 3: a(f"L_wq_skip{self.br}:")

    def issue_wo(self, half, vA):
        a = self.a
        reg = R1 if half == 0 else R3
        a(f"s_mul_i32 s{sT0}, s{sWV}, {7*3584}\ns_add_u32 s{sT0}, s{sT0}, {half*224*896}")
        a(f"s_mul_i32 s{sT1}, s{sWV}, {7*1024}\ns_add_u32 s{sT1}, s{sT1}, {reg}")
        for mm in range(7):
            a(f"s_add_u32 m0, s{sT1}, {mm*1024}")
            a(f"s_add_u32 s{sT2}, s{sT0}, {mm*3584}")
            a(f"buffer_load_dwordx4 v{vA}, s[{sWO}:{sWO+3}], s{sT2} offen lds")

    def wfrag(self, dst, part, t):
        a = self.a
        for sub in range(2):
            a(f"ds_read_b64_tr_b16 {vr(dst+2*sub, 2)}, v{vWR} offset:{part*PART + t*1024 + sub*256}")

    def next_read_chunk(self):
        a = self.a
        a(f"s_lshl_b32 s{sT3}, s{sCR}, 12\ns_add_u32 s{sCR}, s{sCR}, 1\ns_cmp_eq_u32 s{sCR}, 7\ns_cselect_b32 s{sCR}, 0, s{sCR}")
        a(f"v_add_u32 v{vWR}, s{sT3}, v{vWR0}")

    def feat_A(self, acc, dst):
        a = self.a
        for r in range(16): a(f"v_mul_f32 v{vT+r}, s{sC}, v{acc+r}")
        for r in range(16): a(f"v_exp_f32 v{vT+r}, v{vT+r} clamp")
        for r in range(16): a(f"v_max_f32 v{acc+r}, s{sLOG}, v{acc+r}")
        for r in range(16): a(f"v_add_f32 v{acc+r}, v{acc+r}, v{vT+r}")
        for p in range(8): a(f"v_cvt_pk_bf16_f32 v{dst+p}, v{acc+2*p}, v{acc+2*p+1}")

    def feat_B(self, acc, dstp, dstm, vPH, isq, vS=None):
        a = self.a
        P = vU
        for p in range(8): a(f"v_cvt_pk_bf16_f32 v{vT+p}, v{acc+2*p}, v{acc+2*p+1}")
        a(f"v_mfma_f32_32x32x16_bf16 {vr(P,16)}, {vr(vPH,4)}, {vr(vT,4)}, 0")
        a(f"v_mfma_f32_32x32x16_bf16 {vr(P,16)}, {vr(vPH+4,4)}, {vr(vT+4,4)}, {vr(P,16)}")
        m1, m2, t1 = vT+8, vT+9, vT+10
        a(f"v_max3_f32 v{m1}, v{P}, v{P+1}, v{P+2}")
        a(f"v_max3_f32 v{m2}, -v{P}, -v{P+1}, -v{P+2}")
        for r in range(3, 15, 2):
            a(f"v_max3_f32 v{m1}, v{m1}, v{P+r}, v{P+r+1}")
            a(f"v_max3_f32 v{m2}, v{m2}, -v{P+r}, -v{P+r+1}")
        a(f"v_max_f32 v{m1}, v{m1}, v{P+15}")
        a(f"v_max_f32_e64 v{m2}, v{m2}, -v{P+15}")
        a(f"v_permlane32_swap_b32 v{m1}, v{m2}")
        a(f"v_max_f32 v{m1}, v{m1}, v{m2}")
        a(f"v_mul_f32 v{m1}, s{sC}, v{m1}")
        a(f"v_mov_b32 v{m2}, v{m1}")
        a(f"v_permlane32_swap_b32 v{m1}, v{m2}")
        Ep = acc; Em = vT + 16
        for r in range(16):
            a(f"v_fma_f32 v{Ep+r}, s{sC}, v{P+r}, -v{m1}")
            a(f"v_fma_f32 v{Em+r}, -s{sC}, v{P+r}, -v{m2}")
        for r in range(16):
            a(f"v_exp_f32 v{Ep+r}, v{Ep+r}")
            a(f"v_exp_f32 v{Em+r}, v{Em+r}")
        s1, s2, s3, s4 = vT+8, vT+9, vT+10, vT+11
        a(f"v_add_f32 v{s3}, v{Ep+12}, v{Ep+13}\nv_add_f32 v{s4}, v{Em+12}, v{Em+13}")
        a(f"v_add_f32 v{s1}, v{Ep}, v{Ep+1}\nv_add_f32 v{s2}, v{Em}, v{Em+1}")
        a(f"v_add_f32 v{s3}, v{s3}, v{Ep+14}\nv_add_f32 v{s4}, v{s4}, v{Em+14}")
        a(f"v_add_f32 v{s1}, v{s1}, v{Ep+2}\nv_add_f32 v{s2}, v{s2}, v{Em+2}")
        a(f"v_add_f32 v{s3}, v{s3}, v{Ep+15}\nv_add_f32 v{s4}, v{s4}, v{Em+15}")
        a(f"v_add_f32 v{s1}, v{s1}, v{Ep+3}\nv_add_f32 v{s2}, v{s2}, v{Em+3}")
        a(f"v_cndmask_b32 v{s3}, v{s3}, 0, s[{sUP}:{sUP+1}]\nv_cndmask_b32 v{s4}, v{s4}, 0, s[{sUP}:{sUP+1}]")
        for r in range(4, 12, 2):
            a(f"v_add_f32 v{s1}, v{s1}, v{Ep+r}\nv_add_f32 v{s2}, v{s2}, v{Em+r}")
            a(f"v_add_f32 v{s3}, v{s3}, v{Ep+r+1}\nv_add_f32 v{s4}, v{s4}, v{Em+r+1}")
        a(f"v_add_f32 v{s1}, v{s1}, v{s3}\nv_add_f32 v{s2}, v{s2}, v{s4}")
        a(f"v_permlane32_swap_b32 v{s1}, v{s2}")
        a(f"v_add_f32 v{s1}, v{s1}, v{s2}")
        if not isq:
            a(f"v_rcp_f32 v{s1}, v{s1}")
            a(f"s_nop 0\nv_mov_b32 v{s2}, v{s1}")
            a(f"v_permlane32_swap_b32 v{s1}, v{s2}")
            for r in range(16):
                a(f"v_mul_f32 v{Ep+r}, v{s1}, v{Ep+r}")
                a(f"v_mul_f32 v{Em+r}, v{s2}, v{Em+r}")
        else:
            a(f"v_mov_b32 v{s2}, v{s1}")
            a(f"v_permlane32_swap_b32 v{s1}, v{s2}")
            a(f"v_rcp_f32 v{s2}, v{s2}")
            a(f"v_mul_f32 v{vS}, s{sLOG}, v{s1}")
            a(f"v_mul_f32 v{s2}, v{s1}, v{s2}")
            for r in range(16):
                a(f"v_mul_f32 v{Em+r}, v{s2}, v{Em+r}")
        for p in range(8):
            a(f"v_cvt_pk_bf16_f32 v{dstp+p}, v{Ep+2*p}, v{Ep+2*p+1}")
        for p in range(8):
            a(f"v_cvt_pk_bf16_f32 v{dstm+p}, v{Em+2*p}, v{Em+2*p+1}")

    def branch(self, br):
        a = self.a; self.br = br; self.ns = 1
        B = (br == 1)
        px, pw, pwo = (42, 44, 48) if B else (36, 38, 40)
        a("s_waitcnt lgkmcnt(0)")
        a(f"s_mov_b32 s{sX}, s{px}\ns_mov_b32 s{sX+1}, s{px+1}\ns_mov_b32 s{sW}, s{pw}\ns_mov_b32 s{sW+1}, s{pw+1}")
        a(f"s_mov_b32 s{sWS}, s54\ns_mov_b32 s{sWS+1}, s55")
        self.issue_chunk(0)
        a(f"v_mov_b32 v{vT}, {E_OFF + br*256}")
        a(f"buffer_load_dword v{vE}, v{vT}, s[{sWS}:{sWS+3}], 0 offen sc1")
        if B:
            a(f"s_mov_b32 s{sPH}, s46\ns_mov_b32 s{sPH+1}, s47\ns_mov_b32 s{sPH+2}, 25088\ns_mov_b32 s{sPH+3}, 0x20000")
            a(f"v_lshlrev_b32 v{vL16}, 4, v{vL}")
            a(f"s_cmp_ge_u32 s{sWV}, 2\ns_cbranch_scc1 L_noph")
            a(f"s_lshl_b32 s{sT0}, s{sWV}, 10\ns_add_u32 m0, s{sT0}, {WPHI}\ns_mul_i32 s{sT1}, s{sH}, 1568\ns_add_u32 s{sT1}, s{sT1}, s{sT0}")
            a(f"buffer_load_dwordx4 v{vL16}, s[{sPH}:{sPH+3}], s{sT1} offen lds")
            a("L_noph:")
        else:
            a(f"v_lshlrev_b32 v{vL16}, 4, v{vL}")
        self.issue_chunk(1)
        a(f"s_mov_b32 s{sWO}, s{pwo}\ns_mov_b32 s{sWO+1}, s{pwo+1}\ns_mov_b32 s{sWO+2}, 401408\ns_mov_b32 s{sWO+3}, 0x20000")
        a(f"s_mov_b32 s{sOUT}, s50\ns_mov_b32 s{sOUT+1}, s51\ns_mov_b32 s{sOUT+2}, 3670016\ns_mov_b32 s{sOUT+3}, 0x20000")
        a(f"s_mov_b32 s{sUP}, 0\ns_mov_b32 s{sUP+1}, -1\ns_mov_b32 s{sC}, {LOG2E:#x}\ns_mov_b32 s{sLOG}, {EPS:#x}")
        t0, t1, t2, t3 = vT, vT+1, vT+2, vT+3
        a(f"v_and_b32 v{t0}, 31, v{vL}\nv_lshrrev_b32 v{t1}, 5, v{vL}")
        a(f"v_bfe_u32 v{t2}, v{vL}, 1, 3\nv_xor_b32 v{t2}, v{t2}, v{t1}")
        a(f"v_lshlrev_b32 v{t3}, 7, v{t0}\nv_add_u32 v{t3}, s{sXM}, v{t3}")
        a(f"v_lshl_add_u32 v{vXR}, v{t2}, 4, v{t3}")
        for t in range(1, 4): a(f"v_xor_b32 v{vXR+t}, {32*t}, v{vXR}")
        a(f"v_bfe_u32 v{t2}, v{vL}, 2, 2\nv_lshl_add_u32 v{t2}, v{t1}, 3, v{t2}\nv_lshlrev_b32 v{t2}, 6, v{t2}")
        a(f"v_bfe_u32 v{t3}, v{vL}, 4, 1\nv_and_b32 v{t0}, 3, v{vL}\nv_lshl_add_u32 v{t3}, v{t3}, 2, v{t0}\nv_min_u32 v{t3}, 6, v{t3}")
        vCC = 15
        a(f"v_lshlrev_b32 v{vCC}, 3, v{t3}")
        a(f"s_and_b32 s{sT0}, s{sH}, 1\ns_lshl_b32 s{sT0}, s{sT0}, 3")
        a(f"v_add3_u32 v{vWR0}, v{t2}, v{vCC}, s{sT0}")
        for r in range(16):
            a(f"v_mov_b32 v{vK+r}, {'0' if B else 's%d' % sLOG}")
            a(f"v_mov_b32 v{vQ+r}, {'0' if B else 's%d' % sLOG}")
            a(f"v_mov_b32 v{vV+r}, 0")
        a(f"s_lshl_b32 s{sPB}, s{sH}, 16\ns_add_u32 s{sPB}, s{sPB}, {P_OFF + br*16*65536}\ns_lshl_b32 s{sT0}, s{sWV}, 10\ns_add_u32 s{sPB}, s{sPB}, s{sT0}")
        a(f"s_lshl_b32 s{sOB}, s{sRB}, 18\ns_add_u32 s{sOB}, s{sOB}, {O_OFF + br*8*262144}")
        self.stamp()
        F0k, F0v, F1k, F1v = vWF, vWF+4, vWF+8, vWF+12
        for j in range(7):
            slot = j & 1
            self.next_read_chunk()
            a(f"s_waitcnt vmcnt({5 if j < 5 else (5 if j == 5 else 2)})")
            a("s_barrier")
            for t in range(4):
                a(f"ds_read_b128 {vr(vXF+16*j+4*t,4)}, v{vXR+t} offset:{slot*4096}")
            self.wfrag(F0k, 0, 0); self.wfrag(F0v, 1, 0)
            self.wfrag(F1k, 0, 1); self.wfrag(F1v, 1, 1)
            a("s_waitcnt lgkmcnt(8)")
            if j < 5: self.issue_chunk(slot)
            elif j == 5: self.issue_wq(0); self.issue_wq(1)
            else: self.issue_wq(2); self.issue_wq(3)
            for t in range(4):
                fk, fv = (F0k, F0v) if t % 2 == 0 else (F1k, F1v)
                a(f"s_waitcnt lgkmcnt({4 if t < 3 else 0})")
                xf = vr(vXF+16*j+4*t, 4)
                a(f"v_mfma_f32_32x32x16_bf16 {vr(vK,16)}, {vr(fk,4)}, {xf}, {vr(vK,16)}")
                a(f"v_mfma_f32_32x32x16_bf16 {vr(vV,16)}, {vr(fv,4)}, {xf}, {vr(vV,16)}")
                if t < 2:
                    self.wfrag(fk, 0, t+2); self.wfrag(fv, 1, t+2)
        self.stamp()
        a(f"v_readfirstlane_b32 s{sT0}, v{vE}")
        a(f"s_lshr_b32 s{sT1}, s{sT0}, 16\ns_add_u32 s{sT0}, s{sT0}, 1\ns_and_b32 s{sT0}, s{sT0}, 0x3fff")
        a(f"s_add_u32 s{sT2}, s{sT0}, 1\ns_and_b32 s{sT2}, s{sT2}, 0x3fff\ns_cmp_eq_u32 s{sT0}, s{sT1}\ns_cselect_b32 s{sTAG}, s{sT2}, s{sT0}")
        a(f"s_lshl_b32 s{sTAGHI}, s{sTAG}, 16")
        vPH = 240
        if B:
            a(f"v_lshrrev_b32 v{t0}, 5, v{vL}\nv_bfe_u32 v{t1}, v{vL}, 2, 2\nv_lshl_add_u32 v{t0}, v{t0}, 2, v{t1}")
            a(f"v_mul_u32_u24 v{t1}, 56, v{t0}\nv_add_u32 v{t1}, v{t1}, v{vCC}")
            a(f"v_add_u32 v{t0}, 24, v{t0}\nv_min_u32 v{t0}, 27, v{t0}\nv_mul_u32_u24 v{t0}, 56, v{t0}\nv_add_u32 v{t0}, v{t0}, v{vCC}")
            a(f"v_add_u32 v{t0}, {WPHI}, v{t0}\nv_add_u32 v{t1}, {WPHI}, v{t1}")
            for u in range(2):
                for sub in range(2):
                    if u == 1 and sub == 1:
                        a(f"ds_read_b64_tr_b16 {vr(vPH+6,2)}, v{t0}")
                    else:
                        a(f"ds_read_b64_tr_b16 {vr(vPH+4*u+2*sub,2)}, v{t1} offset:{(16*u+8*sub)*56}")
            a("s_waitcnt lgkmcnt(0)")
            a(f"v_cndmask_b32 v{vPH+6}, v{vPH+6}, 0, s[{sUP}:{sUP+1}]\nv_cndmask_b32 v{vPH+7}, v{vPH+7}, 0, s[{sUP}:{sUP+1}]")
            PKp, PKm = vWF, vWF+8
            self.feat_B(vK, PKp, PKm, vPH, False)
        else:
            PKp = vWF
            self.feat_A(vK, PKp)
        a(f"v_cndmask_b32 v{vV+12}, v{vV+12}, 1.0, s[{sUP}:{sUP+1}]")
        PV = vU
        for p in range(8): a(f"v_cvt_pk_bf16_f32 v{PV+p}, v{vV+2*p}, v{vV+2*p+1}")
        a(f"v_and_b32 v{t0}, 31, v{vL}\nv_lshrrev_b32 v{t1}, 5, v{vL}")
        a(f"v_and_b32 v{t2}, 7, v{vL}\nv_bfe_u32 v{t3}, v{vL}, 2, 2\nv_lshl_add_u32 v{t2}, v{t2}, 2, v{t3}\nv_xor_b32 v{t2}, v{t2}, v{t1}")
        a(f"v_lshlrev_b32 v{t0}, 8, v{t0}\nv_add_u32 v{t0}, s{sXM}, v{t0}\nv_lshl_add_u32 v{t0}, v{t2}, 3, v{t0}")
        segs = [(0, PKp), (2, PV)] + ([(1, PKm)] if B else [])
        n = 0
        for seg, src in segs:
            for g in range(4):
                c = (seg*8 + 2*g) * 8
                ta = vT + 4 + (n % 8); n += 1
                if c: a(f"v_xor_b32 v{ta}, {c}, v{t0}")
                a(f"ds_write_b64 v{ta if c else t0}, {vr(src+2*g,2)}")
        ra, rb_ = vT+12, vT+13
        a(f"v_lshrrev_b32 v{t0}, 2, v{vL}")
        a(f"v_and_b32 v{t1}, 7, v{t0}\nv_lshrrev_b32 v{t2}, 2, v{t0}\nv_lshl_add_u32 v{t1}, v{t1}, 2, v{t2}")
        a(f"v_and_b32 v{t2}, 3, v{vL}\nv_xor_b32 v{t1}, v{t1}, v{t2}")
        a(f"v_lshlrev_b32 v{t0}, 8, v{t0}\nv_lshl_add_u32 v{t0}, v{t1}, 3, v{t0}\nv_add_u32 v{t0}, {R3}, v{t0}")
        sFT, sET = 78, 79
        if B: a(f"s_and_b32 s{sFT}, s{sWV}, 3\ns_lshr_b32 s{sET}, s{sWV}, 2")
        else: a(f"s_and_b32 s{sFT}, s{sWV}, 1\ns_bfe_u32 s{sET}, s{sWV}, 0x10001")
        a(f"s_lshl_b32 s{sT0}, s{sFT}, 5\ns_lshl_b32 s{sT1}, s{sET}, 5\ns_add_u32 s{sT1}, s{sT1}, 128")
        a(f"v_xor_b32 v{ra}, s{sT0}, v{t0}\nv_xor_b32 v{rb_}, s{sT1}, v{t0}")
        vWOA = vXA
        a(f"v_lshrrev_b32 v{t0}, 4, v{vL}\nv_lshlrev_b32 v{t1}, 2, v{t0}\nv_sub_u32 v{t1}, v{vL}, v{t1}\nv_and_b32 v{t1}, 15, v{t1}\nv_min_u32 v{t1}, 13, v{t1}")
        a(f"v_mul_u32_u24 v{t0}, 896, v{t0}\nv_lshl_add_u32 v{vWOA}, v{t1}, 4, v{t0}")
        a(f"s_and_b32 s{sT0}, s{sH}, 3\ns_mul_i32 s{sT0}, s{sT0}, 224\nv_add_u32 v{vWOA}, s{sT0}, v{vWOA}")
        a("s_waitcnt vmcnt(0) lgkmcnt(0)")
        a("s_barrier")
        self.stamp()
        self.issue_wo(0, vWOA)
        KV = vU + 8
        if not B: a(f"s_cmp_ge_u32 s{sWV}, 4\ns_cbranch_scc1 L_nokv{br}")
        fr = [vK, vK+8, vV, vV+8]
        def rd(st):
            b = fr[st % 4]
            for sub in range(2):
                a(f"ds_read_b64_tr_b16 {vr(b+2*sub,2)}, v{ra} offset:{(32*st+16*sub)*256}")
            for sub in range(2):
                a(f"ds_read_b64_tr_b16 {vr(b+4+2*sub,2)}, v{rb_} offset:{(32*st+16*sub)*256}")
        for st in range(3): rd(st)
        for st in range(8):
            if st + 3 < 8: rd(st+3)
            left = min(7 - st, 3)
            a(f"s_waitcnt lgkmcnt({4*left})")
            b = fr[st % 4]
            a(f"v_mfma_f32_16x16x32_bf16 {vr(KV,4)}, {vr(b,4)}, {vr(b+4,4)}, {'0' if st == 0 else vr(KV,4)}")
        a(f"v_cvt_pk_bf16_f32 v{t0}, v{KV}, v{KV+1}\nv_cvt_pk_bf16_f32 v{t1}, v{KV+2}, v{KV+3}")
        a(f"s_mov_b32 s{sT1}, 0xffff0000")
        a(f"v_mov_b32 v{t2}, s{sTAG}")
        a(f"v_lshl_or_b32 v{KV}, v{t0}, 16, v{t2}\nv_and_or_b32 v{KV+1}, v{t0}, s{sT1}, v{t2}")
        a(f"v_lshl_or_b32 v{KV+2}, v{t1}, 16, v{t2}\nv_and_or_b32 v{KV+3}, v{t1}, s{sT1}, v{t2}")
        a(f"s_lshl_b32 s{sT0}, s{sRB}, 13\ns_add_u32 s{sT0}, s{sT0}, s{sPB}")
        a(f"buffer_store_dwordx4 {vr(KV,4)}, v{vL16}, s[{sWS}:{sWS+3}], s{sT0} offen sc1")
        if not B: a(f"L_nokv{br}:")
        a("s_barrier")
        self.stamp()
        self.issue_wo(1, vWOA)
        Fq = [vWF, vWF+4, vWF+8, vWF+12]
        a(f"s_mov_b32 s{sCR}, s{sROT}")
        for j in range(7):
            self.next_read_chunk()
            for t in range(4): self.wfrag(Fq[t], 2, t)
            for t in range(4):
                a(f"s_waitcnt lgkmcnt({6-2*t})")
                a(f"v_mfma_f32_32x32x16_bf16 {vr(vQ,16)}, {vr(Fq[t],4)}, {vr(vXF+16*j+4*t,4)}, {vr(vQ,16)}")
        self.stamp()
        PQp, PQm, vS = vWF, vWF+8, vXA+1
        if B: self.feat_B(vQ, PQp, PQm, vPH, True, vS)
        else: self.feat_A(vQ, PQp)
        self.stamp()
        a("s_waitcnt vmcnt(0)\ns_barrier")
        wa = [vT+4, vT+5]
        a(f"v_lshrrev_b32 v{t0}, 5, v{vL}\nv_bfe_u32 v{t1}, v{vL}, 2, 2")
        a(f"v_mul_u32_u24 v{t2}, 7, v{t0}\nv_add_u32 v{t2}, v{t2}, v{t1}")
        a(f"s_and_b32 s{sT0}, s{sWV}, 3\ns_mul_i32 s{sT0}, s{sT0}, 56")
        for t in range(2):
            a(f"v_add_u32 v{t3}, {14*t}, v{t2}")
            a(f"v_and_b32 v{t0}, 3, v{t3}\nv_lshlrev_b32 v{t0}, 6, v{t0}\nv_add3_u32 v{t0}, v{t0}, v{vCC}, s{sT0}\nv_and_b32 v{t0}, 255, v{t0}")
            a(f"v_lshl_add_u32 v{wa[t]}, v{t3}, 8, v{t0}")
        a(f"v_add_u32 v{vT+6}, {R3}, v{wa[0]}\nv_add_u32 v{vT+7}, {R3}, v{wa[1]}")
        a(f"s_mov_b32 s{sT1}, 0xffff")
        cnt = 0
        for hh in range(16):
            for t in range(2):
                ad = wa[t] if hh < 8 else vT+6+t
                d = vXF + (hh*2+t)*4
                for sub in range(2):
                    a(f"ds_read_b64_tr_b16 {vr(d+2*sub,2)}, v{ad} offset:{(28*(hh%8)+4*sub)*256}")
            if hh >= 2:
                a("s_waitcnt lgkmcnt(8)")
                for t in range(2): a(f"v_and_b32 v{vXF+((hh-2)*2+t)*4+3}, s{sT1}, v{vXF+((hh-2)*2+t)*4+3}")
        a("s_waitcnt lgkmcnt(0)")
        for hh in (14, 15):
            for t in range(2): a(f"v_and_b32 v{vXF+(hh*2+t)*4+3}, s{sT1}, v{vXF+(hh*2+t)*4+3}")
        self.stamp()
        if not B: a(f"s_cmp_ge_u32 s{sWV}, 4\ns_cbranch_scc1 L_nored{br}")
        a(f"s_mov_b32 s{sRETRY}, 0")
        a(f"L_h1_{br}:")
        G0 = vK
        for p in range(8):
            a(f"s_add_u32 s{sT0}, s{sPB}, {p*8192}")
            a(f"buffer_load_dwordx4 {vr(G0+4*p,4)}, v{vL16}, s[{sWS}:{sWS+3}], s{sT0} offen sc1")
        a(f"s_add_u32 s{sRETRY}, s{sRETRY}, 1")
        mm = vT+8
        for p in range(8):
            a(f"s_waitcnt vmcnt({7-p})")
            for i in range(4): a(f"v_xor_b32 v{G0+4*p+i}, s{sTAG}, v{G0+4*p+i}")
            if p == 0:
                a(f"v_or3_b32 v{mm}, v{G0}, v{G0+1}, v{G0+2}\nv_or_b32 v{mm}, v{mm}, v{G0+3}")
            else:
                a(f"v_or3_b32 v{mm}, v{mm}, v{G0+4*p}, v{G0+4*p+1}\nv_or3_b32 v{mm}, v{mm}, v{G0+4*p+2}, v{G0+4*p+3}")
                for i in range(4): a(f"v_add_f32 v{G0+i}, v{G0+i}, v{G0+4*p+i}")
        a(f"v_and_b32 v{mm}, 0xffff, v{mm}\nv_cmp_ne_u32 vcc, 0, v{mm}")
        a(f"s_cmp_ge_u32 s{sRETRY}, 100000\ns_cbranch_scc1 L_h1x_{br}\ns_cbranch_vccnz L_h1_{br}")
        a(f"L_h1x_{br}:")
        a(f"v_lshrrev_b32 v{t0}, 4, v{vL}")
        a(f"s_and_b32 s{sT0}, s{sFT}, 1\ns_lshl_b32 s{sT0}, s{sT0}, 2\nv_add_u32 v{t1}, s{sT0}, v{t0}\nv_cmp_eq_u32 vcc, 7, v{t1}")
        a(f"v_cvt_pk_bf16_f32 v{G0}, v{G0}, v{G0+1}\nv_cvt_pk_bf16_f32 v{G0+1}, v{G0+2}, v{G0+3}")
        a(f"v_cndmask_b32 v{G0}, v{G0}, 0, vcc\nv_cndmask_b32 v{G0+1}, v{G0+1}, 0, vcc".replace("v_cndmask_b32", "v_cndmask_b32_e64"))
        a(f"v_and_b32 v{t1}, 15, v{vL}\ns_lshl_b32 s{sT0}, s{sET}, 4\nv_add_u32 v{t1}, s{sT0}, v{t1}\nv_mul_u32_u24 v{t1}, 144, v{t1}")
        a(f"v_and_b32 v{t2}, 1, v{t0}\nv_lshrrev_b32 v{t0}, 1, v{t0}\nv_lshlrev_b32 v{t0}, 3, v{t0}\nv_lshl_add_u32 v{t0}, v{t2}, 4, v{t0}")
        a(f"s_lshl_b32 s{sT0}, s{sFT}, 5\ns_add_u32 s{sT0}, s{sT0}, {KVT}\nv_add3_u32 v{t1}, v{t1}, v{t0}, s{sT0}")
        a(f"ds_write_b64 v{t1}, {vr(G0,2)}")
        if not B: a(f"L_nored{br}:")
        a(f"v_and_b32 v{t0}, 3, v{vL}\nv_bfe_u32 v{t1}, v{vL}, 3, 1\nv_lshl_add_u32 v{t0}, v{t1}, 2, v{t0}")
        a(f"v_bfe_u32 v{t1}, v{vL}, 4, 1\nv_bfe_u32 v{t2}, v{vL}, 2, 1\nv_lshl_add_u32 v{t1}, v{t1}, 1, v{t2}")
        a(f"v_mad_u32_u24 v{t1}, v{t1}, 7, v{t0}\nv_cmp_eq_u32 vcc, 7, v{t0}\nv_cndmask_b32_e64 v{t1}, v{t1}, 28, vcc")
        a(f"v_mul_u32_u24 v{t1}, 144, v{t1}\nv_lshrrev_b32 v{t2}, 5, v{vL}\nv_lshl_add_u32 v{t1}, v{t2}, 4, v{t1}\nv_add_u32 v{t1}, {KVT}, v{t1}")
        a("s_waitcnt lgkmcnt(0)\ns_barrier")
        self.stamp()
        nu = 4 if B else 2
        KA = vK
        for u in range(nu): a(f"ds_read_b128 {vr(KA+4*u,4)}, v{t1} offset:{32*u}")
        N = vQ
        for u in range(nu):
            a(f"s_waitcnt lgkmcnt({nu-1-u})")
            a(f"v_mfma_f32_32x32x16_bf16 {vr(N,16)}, {vr(KA+4*u,4)}, {vr(vWF+4*u,4)}, {'0' if u == 0 else vr(N,16)}")
        if B: a(f"v_add_f32 v{t0}, v{N+7}, v{vS}")
        else: a(f"v_add_f32 v{t0}, s{sLOG}, v{N+7}")
        a(f"v_rcp_f32 v{t0}, v{t0}")
        for r in range(16):
            if r % 8 != 7: a(f"v_mul_f32 v{N+r}, v{t0}, v{N+r}")
        OP = vV
        for p in range(8): a(f"v_cvt_pk_bf16_f32 v{OP+p}, v{N+2*p}, v{N+2*p+1}")
        a(f"v_mov_b32 v{t2}, s{sTAGHI}")
        a(f"s_mov_b32 s{sT1}, 0xffff")
        a(f"v_and_or_b32 v{OP+3}, v{OP+3}, s{sT1}, v{t2}\nv_and_or_b32 v{OP+7}, v{OP+7}, s{sT1}, v{t2}")
        a(f"s_lshl_b32 s{sT0}, s{sWV}, 4\ns_add_u32 s{sT0}, s{sT0}, s{sH}\ns_lshl_b32 s{sT0}, s{sT0}, 11\ns_add_u32 s{sT0}, s{sT0}, s{sOB}")
        a(f"buffer_store_dwordx4 {vr(OP,4)}, v{vL16}, s[{sWS}:{sWS+3}], s{sT0} offen sc1")
        a(f"buffer_store_dwordx4 {vr(OP+4,4)}, v{vL16}, s[{sWS}:{sWS+3}], s{sT0} offen offset:1024 sc1")
        a("s_waitcnt vmcnt(0)")
        self.stamp()
        sOS, sOM = sXB, sWB
        a(f"s_lshr_b32 s{sT0}, s{sWV}, 2\ns_lshl_b32 s{sT0}, s{sT0}, 4\ns_and_b32 s{sT1}, s{sWV}, 3\ns_add_u32 s{sT0}, s{sT0}, s{sT1}\ns_lshl_b32 s{sT0}, s{sT0}, 11")
        a(f"s_add_u32 s{sOM}, s{sT0}, {R3}")
        a(f"s_lshr_b32 s{sT1}, s{sH}, 2\ns_lshl_b32 s{sT1}, s{sT1}, 16\ns_add_u32 s{sOS}, s{sT0}, s{sT1}\ns_add_u32 s{sOS}, s{sOS}, s{sOB}")
        def odma(q):
            a(f"s_add_u32 m0, s{sOM}, {q*8192}\ns_add_u32 s{sT0}, s{sOS}, {q*8192}")
            a(f"buffer_load_dwordx4 v{vL16}, s[{sWS}:{sWS+3}], s{sT0} offen sc1 lds")
            a(f"buffer_load_dwordx4 v{vL16}, s[{sWS}:{sWS+3}], s{sT0} offen offset:1024 sc1 lds")
        for q in range(4): odma(q)
        vCK, vOR = vT+4, vT+5
        a(f"v_add_u32 v{vCK}, s{sOM}, v{vL16}")
        a(f"s_lshr_b32 s{sT0}, s{sWV}, 2\ns_lshl_b32 s{sT0}, s{sT0}, 15\ns_add_u32 s{sT0}, s{sT0}, {R3}\nv_add_u32 v{vOR}, s{sT0}, v{vL16}")
        ACC = vK
        OF = [vU, vU+4, vU+8, vU+12]
        for q in range(4):
            a(f"s_mov_b32 s{sRETRY}, 0")
            a(f"s_waitcnt vmcnt({6-2*q})")
            a(f"L_h2_{br}_{q}:")
            a(f"ds_read_b32 v{t0}, v{vCK} offset:{q*8192+12}\nds_read_b32 v{t1}, v{vCK} offset:{q*8192+1024+12}")
            a("s_waitcnt lgkmcnt(0)")
            a(f"v_xor_b32 v{t0}, s{sTAGHI}, v{t0}\nv_xor_b32 v{t1}, s{sTAGHI}, v{t1}\nv_or_b32 v{t0}, v{t0}, v{t1}")
            a(f"v_cmp_lt_u32 vcc, 0xffff, v{t0}")
            a(f"s_cbranch_vccz L_h2x_{br}_{q}")
            a(f"s_add_u32 s{sRETRY}, s{sRETRY}, 1\ns_cmp_ge_u32 s{sRETRY}, 100000\ns_cbranch_scc1 L_h2x_{br}_{q}")
            odma(q)
            a(f"s_waitcnt vmcnt(0)\ns_branch L_h2_{br}_{q}")
            a(f"L_h2x_{br}_{q}:")
            a("s_barrier")
            for i in range(3): a(f"ds_read_b128 {vr(OF[i],4)}, v{vOR} offset:{(q*8+i)*1024}")
            for i in range(8):
                if i + 3 < 8: a(f"ds_read_b128 {vr(OF[(i+3)%4],4)}, v{vOR} offset:{(q*8+i+3)*1024}")
                a(f"s_waitcnt lgkmcnt({min(7-i,3)})")
                ks = q*8 + i
                a(f"v_mfma_f32_32x32x16_bf16 {vr(ACC,16)}, {vr(vXF+4*ks,4)}, {vr(OF[i%4],4)}, {'0' if ks == 0 else vr(ACC,16)}")
        self.stamp()
        a(f"s_or_b32 s{sT0}, s{sH}, s{sRB}\ns_or_b32 s{sT0}, s{sT0}, s{sWV}\ns_cmp_eq_u32 s{sT0}, 0\ns_cbranch_scc0 L_noe{br}")
        a(f"s_or_b32 s{sT0}, s{sTAG}, s{sTAGHI}\nv_mov_b32 v{t0}, s{sT0}\nv_mov_b32 v{t1}, {E_OFF + br*256}")
        a(f"buffer_store_dword v{t0}, v{t1}, s[{sWS}:{sWS+3}], 0 offen sc1")
        a(f"L_noe{br}:")
        a(f"v_and_b32 v{t0}, 31, v{vL}\nv_lshrrev_b32 v{t1}, 5, v{vL}\nv_mul_u32_u24 v{t0}, {OUTP}, v{t0}\nv_lshl_add_u32 v{t0}, v{t1}, 3, v{t0}")
        a(f"s_lshr_b32 s{sT0}, s{sWV}, 2\ns_mul_i32 s{sT0}, s{sT0}, {32*OUTP}\ns_and_b32 s{sT1}, s{sWV}, 3\ns_mul_i32 s{sT1}, s{sT1}, 56\ns_add_u32 s{sT0}, s{sT0}, s{sT1}")
        a(f"v_add_u32 v{t0}, s{sT0}, v{t0}")
        for p in range(8): a(f"v_cvt_pk_bf16_f32 v{vV+p}, v{ACC+2*p}, v{ACC+2*p+1}")
        for g in range(3): a(f"ds_write_b64 v{t0}, {vr(vV+2*g,2)} offset:{R1+16*g}")
        a(f"s_mov_b32 exec_hi, 0")
        a(f"ds_write_b64 v{t0}, {vr(vV+6,2)} offset:{R1+48}")
        a(f"s_mov_b32 exec_hi, -1")
        a(f"s_mov_b32 s{sT1}, 4682")
        for k in range(2):
            a(f"v_add_u32 v{t1}, {512*k}, v0")
            a(f"v_mul_u32_u24 v{t2}, s{sT1}, v{t1}\nv_lshrrev_b32 v{t2}, 16, v{t2}")
            a(f"v_mul_u32_u24 v{t3}, 14, v{t2}\nv_sub_u32 v{t3}, v{t1}, v{t3}\nv_lshlrev_b32 v{t3}, 4, v{t3}")
            a(f"v_mad_u32_u24 v{vT+8+k}, v{t2}, s{sC+0 if False else sT2}, v{t3}" if False else f"v_mul_u32_u24 v{vT+8+k}, {OUTP}, v{t2}")
            a(f"v_add_u32 v{vT+8+k}, v{vT+8+k}, v{t3}")
            a(f"v_mul_u32_u24 v{vT+10+k}, 1792, v{t2}\nv_add_u32 v{vT+10+k}, v{vT+10+k}, v{t3}")
        a(f"s_lshl_b32 s{sT0}, s{sRB}, 2\ns_lshr_b32 s{sT1}, s{sH}, 2\ns_add_u32 s{sT0}, s{sT0}, s{sT1}\ns_mul_i32 s{sT0}, s{sT0}, {64*1792}")
        a(f"s_and_b32 s{sT1}, s{sH}, 3\ns_mul_i32 s{sT1}, s{sT1}, 224\ns_add_u32 s{sT0}, s{sT0}, s{sT1}\ns_add_u32 s{sT0}, s{sT0}, {br*896}")
        a("s_waitcnt lgkmcnt(0)\ns_barrier")
        a(f"ds_read_b128 {vr(vQ,4)}, v{vT+8} offset:{R1}")
        a(f"s_cmp_ge_u32 s{sWV}, 6\ns_cbranch_scc1 L_st1_{br}")
        a(f"ds_read_b128 {vr(vQ+4,4)}, v{vT+9} offset:{R1}")
        a("s_waitcnt lgkmcnt(0)")
        a(f"buffer_store_dwordx4 {vr(vQ+4,4)}, v{vT+11}, s[{sOUT}:{sOUT+3}], s{sT0} offen")
        a(f"L_st1_{br}:")
        a("s_waitcnt lgkmcnt(0)")
        a(f"buffer_store_dwordx4 {vr(vQ,4)}, v{vT+10}, s[{sOUT}:{sOUT+3}], s{sT0} offen")
        if self.stamps:
            a("s_waitcnt vmcnt(0)")
            self.stamp()
            a(f"s_cmp_eq_u32 s{sWV}, 0\ns_cbranch_scc0 L_end")
            a(f"s_mov_b64 exec, 1\ns_lshl_b32 s{sT0}, s2, 6\ns_add_u32 s{sT0}, s{sT0}, {S_OFF}\nv_mov_b32 v{t1}, 0")
            for i in range(self.ns):
                a(f"v_mov_b32 v{t0}, s{sST+i}\nbuffer_store_dword v{t0}, v{t1}, s[{sWS}:{sWS+3}], s{sT0} offen offset:{4*i}")
        a("s_endpgm")

    def build(self):
        a = self.a
        self.prologue()
        self.branch(1)
        a("L_A:")
        self.branch(0)
        a("L_end:\ns_endpgm")
        body = a.finish()
        src = open(f"cdna_kernels/{NAME}.s.ref").read().split("\n")
        hdr = [l for l in src if l.startswith(";") and "@launch" not in l and l.startswith("; ") and ("offset" in l or "Kernarg" in l)]
        out = "\n".join(hdr) + "\n"
        out += f"; @launch grid=(256,1,1) block=(512,1,1) lds={LDS_BYTES}\n"
        out += f'.amdgcn_target "amdgcn-amd-amdhsa--gfx950"\n.text\n.globl {KN}\n.p2align 8\n.type {KN},@function\n{KN}:\n'
        out += body
        out += f'''.section .rodata,"a"
.p2align 6
.amdhsa_kernel {KN}
  .amdhsa_next_free_vgpr 256
  .amdhsa_next_free_sgpr 102
  .amdhsa_accum_offset 256
  .amdhsa_group_segment_fixed_size 0
  .amdhsa_kernarg_size 80
  .amdhsa_user_sgpr_count 2
  .amdhsa_user_sgpr_kernarg_segment_ptr 1
  .amdhsa_system_sgpr_workgroup_id_x 1
.end_amdhsa_kernel
'''
        return out

if __name__ == "__main__":
    open("k1.s", "w").write(G(False).build())
    open("k1_st.s", "w").write(G(True).build())
```

```python
import sys
from asmdsl import Asm

NAME = "concat_heads__linear_attn_block__linear_kernel_hedgehog__prompt"
KN = NAME + "_kernel"

PART = 28672
R1 = 0
R2 = 2 * PART
R3 = 3 * PART
R4 = R3 + 65536
WPHI = R4
KVT = R4 + 2048
LDS_BYTES = 163840
OUTP = 240

E_OFF = 0x0
X_OFF = 0x10000
P_OFF = 0x100000
O_OFF = 0x400000
S_OFF = 0x1000000

sX, sW, sWO, sWS, sOUT, sPH = 8, 12, 16, 20, 24, 28
sWV, sH, sRB, sROT = 32, 33, 34, 35
sTAG, sTAGHI = 56, 57
sXB = 58
sWB = 59
sWM = 60
sXM = 61
sCI = 62
sCR = 63
sT0, sT1, sT2, sT3 = 64, 65, 66, 67
sPB = 68
sOB = 69
sUP = 70
sRETRY = 72
sC = 73
sLOG = 74
sSV = 76
sST = 80

vL = 1
vXA = 2
vWA = 6
vXR = 7
vWR0 = 11
vWR = 12
vL16 = 13
vE = 14
vT = 16
vWF = 48
vK = 64; vV = 80; vQ = 96
vU = 112
vXF = 128

LOG2E = 0x3fb8aa3b
EPS = 0x358637bd

def vr(b, n): return f"v[{b}:{b+n-1}]"

class G:
    def __init__(self, stamps=False, fast=False):
        self.a = Asm(); self.stamps = stamps; self.ns = 0; self.fast = fast
    def stamp(self):
        if not self.stamps: return
        a = self.a
        a(f"s_memrealtime s[{sSV}:{sSV+1}]\ns_waitcnt lgkmcnt(0)\ns_mov_b32 s{sST+self.ns}, s{sSV}")
        self.ns += 1

    def prologue(self):
        a = self.a
        if self.stamps: a(f"s_memrealtime s[{sST}:{sST+1}]")
        a("s_cmp_ge_u32 s2, 256\ns_cbranch_scc1 L_end")
        a("s_load_dwordx16 s[36:51], s[0:1], 0")
        a("s_load_dwordx4 s[52:55], s[0:1], 64")
        a(f"v_lshrrev_b32 v{vT}, 6, v0")
        a(f"v_and_b32 v{vL}, 63, v0")
        a(f"v_readfirstlane_b32 s{sWV}, v{vT}")
        a(f"s_lshr_b32 s{sT0}, s2, 3")
        a(f"s_and_b32 s{sH}, s{sT0}, 15")
        a(f"s_and_b32 s{sT1}, s2, 3\ns_lshl_b32 s{sT1}, s{sT1}, 1\ns_lshr_b32 s{sT2}, s{sT0}, 4\ns_add_u32 s{sRB}, s{sT1}, s{sT2}")
        a(f"s_mul_i32 s{sT1}, s{sT0}, 37\ns_lshr_b32 s{sT1}, s{sT1}, 8\ns_mul_i32 s{sT1}, s{sT1}, 7\ns_sub_u32 s{sROT}, s{sT0}, s{sT1}")
        a(f"v_lshrrev_b32 v{vT}, 3, v{vL}")
        a(f"v_mul_u32_u24 v{vT}, 896, v{vT}")
        a(f"v_and_b32 v{vT+1}, 7, v{vL}\nv_lshrrev_b32 v{vT+2}, 4, v{vL}\nv_xor_b32 v{vT+1}, v{vT+1}, v{vT+2}")
        a(f"v_lshl_add_u32 v{vXA}, v{vT+1}, 4, v{vT}")
        a(f"v_xor_b32 v{vT+1}, 4, v{vT+1}")
        a(f"v_lshl_add_u32 v{vXA+1}, v{vT+1}, 4, v{vT}")
        a(f"v_add_u32 v{vXA+2}, {2*6144}, v{vXA}")
        a(f"v_add_u32 v{vXA+3}, {3*6144}, v{vXA+1}")
        a(f"v_add_u32 v{vXA+1}, 6144, v{vXA+1}")
        a(f"v_lshrrev_b32 v{vT}, 2, v{vL}\nv_mul_u32_u24 v{vT}, 2688, v{vT}\nv_and_b32 v{vT+1}, 3, v{vL}")
        a(f"v_lshl_add_u32 v{vWA}, v{vT+1}, 4, v{vT}")
        a(f"s_mul_i32 s{sT1}, s{sH}, 56\ns_and_b32 s{sT1}, s{sT1}, 0xfffffff0")
        a(f"v_add_u32 v{vWA}, s{sT1}, v{vWA}")
        a(f"s_lshl_b32 s{sT1}, s{sRB}, 3\ns_add_u32 s{sT1}, s{sT1}, s{sWV}\ns_mul_i32 s{sXB}, s{sT1}, {32*896}")
        a(f"s_lshr_b32 s{sT1}, s{sWV}, 2\ns_and_b32 s{sT2}, s{sWV}, 3")
        a(f"s_mul_i32 s{sWB}, s{sT1}, 896\ns_add_u32 s{sWB}, s{sWB}, 896\ns_mul_i32 s{sT3}, s{sT2}, {16*2688}\ns_add_u32 s{sWB}, s{sWB}, s{sT3}")
        a(f"s_mul_i32 s{sWM}, s{sT1}, {PART}\ns_lshl_b32 s{sT3}, s{sT2}, 10\ns_add_u32 s{sWM}, s{sWM}, s{sT3}")
        a(f"s_lshl_b32 s{sXM}, s{sWV}, 13\ns_add_u32 s{sXM}, s{sXM}, {R3}")
        a(f"s_mov_b32 s{sCI}, s{sROT}\ns_mov_b32 s{sCR}, s{sROT}")
        a(f"s_mov_b32 s{sX+2}, 1835008\ns_mov_b32 s{sX+3}, 0x20000")
        a(f"s_mov_b32 s{sW+2}, 1204224\ns_mov_b32 s{sW+3}, 0x20000")
        a(f"s_mov_b32 s{sWS+2}, 0x10000000\ns_mov_b32 s{sWS+3}, 0x20000")
        a("s_bitcmp1_b32 s2, 2")
        a("s_cbranch_scc1 L_A")

    def issue_chunk(self, slot):
        a = self.a
        a(f"s_lshl_b32 s{sT0}, s{sCI}, 7\ns_add_u32 s{sT0}, s{sT0}, s{sXB}")
        a(f"s_mul_i32 s{sT1}, s{sCI}, {64*2688}\ns_add_u32 s{sT1}, s{sT1}, s{sWB}")
        a(f"s_lshl_b32 s{sT2}, s{sCI}, 12\ns_add_u32 m0, s{sT2}, s{sWM}")
        a(f"s_add_u32 s{sCI}, s{sCI}, 1")
        a(f"buffer_load_dwordx4 v{vWA}, s[{sW}:{sW+3}], s{sT1} offen lds")
        a(f"s_add_u32 m0, s{sXM}, {slot*4096}")
        a(f"s_cmp_eq_u32 s{sCI}, 7")
        for i in range(4):
            a(f"buffer_load_dwordx4 v{vXA+i}, s[{sX}:{sX+3}], s{sT0} offen offset:{i*1024} lds")
        a(f"s_cselect_b32 s{sCI}, 0, s{sCI}")

    def issue_wq(self, m):
        a = self.a
        a(f"s_add_u32 s{sT0}, s{sWV}, {8*m}")
        if m == 3: a(f"s_cmp_ge_u32 s{sT0}, 28\ns_cbranch_scc1 L_wq_skip{self.br}")
        a(f"s_mul_i32 s{sT1}, s{sT0}, {16*2688}")
        a(f"s_lshl_b32 s{sT0}, s{sT0}, 10\ns_add_u32 m0, s{sT0}, {R2}\ns_nop 0")
        a(f"buffer_load_dwordx4 v{vWA}, s[{sW}:{sW+3}], s{sT1} offen lds")
        if m == 3: a(f"L_wq_skip{self.br}:")

    def issue_wo(self, half, vA):
        a = self.a
        reg = R1 if half == 0 else R3
        a(f"s_mul_i32 s{sT0}, s{sWV}, {7*3584}\ns_add_u32 s{sT0}, s{sT0}, {half*224*896}")
        a(f"s_mul_i32 s{sT1}, s{sWV}, {7*1024}\ns_add_u32 s{sT1}, s{sT1}, {reg}")
        for mm in range(7):
            a(f"s_add_u32 m0, s{sT1}, {mm*1024}")
            a(f"s_add_u32 s{sT2}, s{sT0}, {mm*3584}")
            a(f"buffer_load_dwordx4 v{vA}, s[{sWO}:{sWO+3}], s{sT2} offen lds")

    def wfrag(self, dst, part, t):
        a = self.a
        for sub in range(2):
            a(f"ds_read_b64_tr_b16 {vr(dst+2*sub, 2)}, v{vWR} offset:{part*PART + t*1024 + sub*256}")

    def next_read_chunk(self):
        a = self.a
        a(f"s_lshl_b32 s{sT3}, s{sCR}, 12\ns_add_u32 s{sCR}, s{sCR}, 1\ns_cmp_eq_u32 s{sCR}, 7\ns_cselect_b32 s{sCR}, 0, s{sCR}")
        a(f"v_add_u32 v{vWR}, s{sT3}, v{vWR0}")

    def feat_A(self, acc, dst):
        a = self.a
        for r in range(16): a(f"v_mul_f32 v{vT+r}, s{sC}, v{acc+r}")
        for r in range(16): a(f"v_exp_f32 v{vT+r}, v{vT+r} clamp")
        for r in range(16): a(f"v_max_f32 v{acc+r}, s{sLOG}, v{acc+r}")
        for r in range(16): a(f"v_add_f32 v{acc+r}, v{acc+r}, v{vT+r}")
        for p in range(8): a(f"v_cvt_pk_bf16_f32 v{dst+p}, v{acc+2*p}, v{acc+2*p+1}")

    def feat_B(self, acc, dstp, dstm, vPH, isq, vS=None):
        a = self.a
        P = vU
        for p in range(8): a(f"v_cvt_pk_bf16_f32 v{vT+p}, v{acc+2*p}, v{acc+2*p+1}")
        a(f"v_mfma_f32_32x32x16_bf16 {vr(P,16)}, {vr(vPH,4)}, {vr(vT,4)}, 0")
        a(f"v_mfma_f32_32x32x16_bf16 {vr(P,16)}, {vr(vPH+4,4)}, {vr(vT+4,4)}, {vr(P,16)}")
        m1, m2, t1 = vT+8, vT+9, vT+10
        a(f"v_max3_f32 v{m1}, v{P}, v{P+1}, v{P+2}")
        a(f"v_max3_f32 v{m2}, -v{P}, -v{P+1}, -v{P+2}")
        for r in range(3, 15, 2):
            a(f"v_max3_f32 v{m1}, v{m1}, v{P+r}, v{P+r+1}")
            a(f"v_max3_f32 v{m2}, v{m2}, -v{P+r}, -v{P+r+1}")
        a(f"v_max_f32 v{m1}, v{m1}, v{P+15}")
        a(f"v_max_f32_e64 v{m2}, v{m2}, -v{P+15}")
        a(f"v_permlane32_swap_b32 v{m1}, v{m2}")
        a(f"v_max_f32 v{m1}, v{m1}, v{m2}")
        a(f"v_mul_f32 v{m1}, s{sC}, v{m1}")
        a(f"v_mov_b32 v{m2}, v{m1}")
        a(f"v_permlane32_swap_b32 v{m1}, v{m2}")
        Ep = acc; Em = vT + 16
        for r in range(16):
            a(f"v_fma_f32 v{Ep+r}, s{sC}, v{P+r}, -v{m1}")
            a(f"v_fma_f32 v{Em+r}, -s{sC}, v{P+r}, -v{m2}")
        for r in range(16):
            a(f"v_exp_f32 v{Ep+r}, v{Ep+r}")
            a(f"v_exp_f32 v{Em+r}, v{Em+r}")
        s1, s2, s3, s4 = vT+8, vT+9, vT+10, vT+11
        a(f"v_add_f32 v{s3}, v{Ep+12}, v{Ep+13}\nv_add_f32 v{s4}, v{Em+12}, v{Em+13}")
        a(f"v_add_f32 v{s1}, v{Ep}, v{Ep+1}\nv_add_f32 v{s2}, v{Em}, v{Em+1}")
        a(f"v_add_f32 v{s3}, v{s3}, v{Ep+14}\nv_add_f32 v{s4}, v{s4}, v{Em+14}")
        a(f"v_add_f32 v{s1}, v{s1}, v{Ep+2}\nv_add_f32 v{s2}, v{s2}, v{Em+2}")
        a(f"v_add_f32 v{s3}, v{s3}, v{Ep+15}\nv_add_f32 v{s4}, v{s4}, v{Em+15}")
        a(f"v_add_f32 v{s1}, v{s1}, v{Ep+3}\nv_add_f32 v{s2}, v{s2}, v{Em+3}")
        a(f"v_cndmask_b32 v{s3}, v{s3}, 0, s[{sUP}:{sUP+1}]\nv_cndmask_b32 v{s4}, v{s4}, 0, s[{sUP}:{sUP+1}]")
        for r in range(4, 12, 2):
            a(f"v_add_f32 v{s1}, v{s1}, v{Ep+r}\nv_add_f32 v{s2}, v{s2}, v{Em+r}")
            a(f"v_add_f32 v{s3}, v{s3}, v{Ep+r+1}\nv_add_f32 v{s4}, v{s4}, v{Em+r+1}")
        a(f"v_add_f32 v{s1}, v{s1}, v{s3}\nv_add_f32 v{s2}, v{s2}, v{s4}")
        a(f"v_permlane32_swap_b32 v{s1}, v{s2}")
        a(f"v_add_f32 v{s1}, v{s1}, v{s2}")
        if not isq:
            a(f"v_rcp_f32 v{s1}, v{s1}")
            a(f"s_nop 0\nv_mov_b32 v{s2}, v{s1}")
            a(f"v_permlane32_swap_b32 v{s1}, v{s2}")
            for r in range(16):
                a(f"v_mul_f32 v{Ep+r}, v{s1}, v{Ep+r}")
                a(f"v_mul_f32 v{Em+r}, v{s2}, v{Em+r}")
        else:
            a(f"v_mov_b32 v{s2}, v{s1}")
            a(f"v_permlane32_swap_b32 v{s1}, v{s2}")
            a(f"v_rcp_f32 v{s2}, v{s2}")
            a(f"v_mul_f32 v{vS}, s{sLOG}, v{s1}")
            a(f"v_mul_f32 v{s2}, v{s1}, v{s2}")
            for r in range(16):
                a(f"v_mul_f32 v{Em+r}, v{s2}, v{Em+r}")
        for p in range(8):
            a(f"v_cvt_pk_bf16_f32 v{dstp+p}, v{Ep+2*p}, v{Ep+2*p+1}")
        for p in range(8):
            a(f"v_cvt_pk_bf16_f32 v{dstm+p}, v{Em+2*p}, v{Em+2*p+1}")

    def branch(self, br):
        a = self.a; self.br = br; self.ns = 1
        B = (br == 1)
        px, pw, pwo = (42, 44, 48) if B else (36, 38, 40)
        a("s_waitcnt lgkmcnt(0)")
        a(f"s_mov_b32 s{sX}, s{px}\ns_mov_b32 s{sX+1}, s{px+1}\ns_mov_b32 s{sW}, s{pw}\ns_mov_b32 s{sW+1}, s{pw+1}")
        a(f"s_mov_b32 s{sWS}, s54\ns_mov_b32 s{sWS+1}, s55")
        self.issue_chunk(0)
        a(f"v_mov_b32 v{vT}, {E_OFF + br*256}")
        a(f"buffer_load_dword v{vE}, v{vT}, s[{sWS}:{sWS+3}], 0 offen sc1")
        if B:
            a(f"s_mov_b32 s{sPH}, s46\ns_mov_b32 s{sPH+1}, s47\ns_mov_b32 s{sPH+2}, 25088\ns_mov_b32 s{sPH+3}, 0x20000")
            a(f"v_lshlrev_b32 v{vL16}, 4, v{vL}")
            a(f"s_cmp_ge_u32 s{sWV}, 2\ns_cbranch_scc1 L_noph")
            a(f"s_lshl_b32 s{sT0}, s{sWV}, 10\ns_add_u32 m0, s{sT0}, {WPHI}\ns_mul_i32 s{sT1}, s{sH}, 1568\ns_add_u32 s{sT1}, s{sT1}, s{sT0}")
            a(f"buffer_load_dwordx4 v{vL16}, s[{sPH}:{sPH+3}], s{sT1} offen lds")
            a("L_noph:")
        else:
            a(f"v_lshlrev_b32 v{vL16}, 4, v{vL}")
        self.issue_chunk(1)
        a(f"s_mov_b32 s{sWO}, s{pwo}\ns_mov_b32 s{sWO+1}, s{pwo+1}\ns_mov_b32 s{sWO+2}, 401408\ns_mov_b32 s{sWO+3}, 0x20000")
        a(f"s_mov_b32 s{sOUT}, s50\ns_mov_b32 s{sOUT+1}, s51\ns_mov_b32 s{sOUT+2}, 3670016\ns_mov_b32 s{sOUT+3}, 0x20000")
        a(f"s_mov_b32 s{sUP}, 0\ns_mov_b32 s{sUP+1}, -1\ns_mov_b32 s{sC}, {LOG2E:#x}\ns_mov_b32 s{sLOG}, {EPS:#x}")
        t0, t1, t2, t3 = vT, vT+1, vT+2, vT+3
        a(f"v_and_b32 v{t0}, 31, v{vL}\nv_lshrrev_b32 v{t1}, 5, v{vL}")
        a(f"v_bfe_u32 v{t2}, v{vL}, 1, 3\nv_xor_b32 v{t2}, v{t2}, v{t1}")
        a(f"v_lshlrev_b32 v{t3}, 7, v{t0}\nv_add_u32 v{t3}, s{sXM}, v{t3}")
        a(f"v_lshl_add_u32 v{vXR}, v{t2}, 4, v{t3}")
        for t in range(1, 4): a(f"v_xor_b32 v{vXR+t}, {32*t}, v{vXR}")
        a(f"v_bfe_u32 v{t2}, v{vL}, 2, 2\nv_lshl_add_u32 v{t2}, v{t1}, 3, v{t2}\nv_lshlrev_b32 v{t2}, 6, v{t2}")
        a(f"v_bfe_u32 v{t3}, v{vL}, 4, 1\nv_and_b32 v{t0}, 3, v{vL}\nv_lshl_add_u32 v{t3}, v{t3}, 2, v{t0}\nv_min_u32 v{t3}, 6, v{t3}")
        vCC = 15
        a(f"v_lshlrev_b32 v{vCC}, 3, v{t3}")
        a(f"s_and_b32 s{sT0}, s{sH}, 1\ns_lshl_b32 s{sT0}, s{sT0}, 3")
        a(f"v_add3_u32 v{vWR0}, v{t2}, v{vCC}, s{sT0}")
        for r in range(16):
            a(f"v_mov_b32 v{vK+r}, {'0' if B else 's%d' % sLOG}")
            a(f"v_mov_b32 v{vQ+r}, {'0' if B else 's%d' % sLOG}")
            a(f"v_mov_b32 v{vV+r}, 0")
        a(f"s_lshl_b32 s{sPB}, s{sH}, 16\ns_add_u32 s{sPB}, s{sPB}, {P_OFF + br*16*65536}\ns_lshl_b32 s{sT0}, s{sWV}, 10\ns_add_u32 s{sPB}, s{sPB}, s{sT0}")
        a(f"s_lshl_b32 s{sOB}, s{sRB}, 18\ns_add_u32 s{sOB}, s{sOB}, {O_OFF + br*8*262144}")
        self.stamp()
        F0k, F0v, F1k, F1v = vWF, vWF+4, vWF+8, vWF+12
        for j in range(7):
            slot = j & 1
            self.next_read_chunk()
            a(f"s_waitcnt vmcnt({5 if j < 5 else (5 if j == 5 else 2)})")
            a("s_barrier")
            for t in range(4):
                a(f"ds_read_b128 {vr(vXF+16*j+4*t,4)}, v{vXR+t} offset:{slot*4096}")
            self.wfrag(F0k, 0, 0); self.wfrag(F0v, 1, 0)
            self.wfrag(F1k, 0, 1); self.wfrag(F1v, 1, 1)
            a("s_waitcnt lgkmcnt(8)")
            if j < 5: self.issue_chunk(slot)
            elif j == 5: self.issue_wq(0); self.issue_wq(1)
            else: self.issue_wq(2); self.issue_wq(3)
            for t in range(4):
                fk, fv = (F0k, F0v) if t % 2 == 0 else (F1k, F1v)
                a(f"s_waitcnt lgkmcnt({4 if t < 3 else 0})")
                xf = vr(vXF+16*j+4*t, 4)
                a(f"v_mfma_f32_32x32x16_bf16 {vr(vK,16)}, {vr(fk,4)}, {xf}, {vr(vK,16)}")
                a(f"v_mfma_f32_32x32x16_bf16 {vr(vV,16)}, {vr(fv,4)}, {xf}, {vr(vV,16)}")
                if t < 2:
                    self.wfrag(fk, 0, t+2); self.wfrag(fv, 1, t+2)
        self.stamp()
        a(f"v_readfirstlane_b32 s{sT0}, v{vE}")
        a(f"s_lshr_b32 s{sT1}, s{sT0}, 16\ns_add_u32 s{sT0}, s{sT0}, 1\ns_and_b32 s{sT0}, s{sT0}, 0x3fff")
        a(f"s_add_u32 s{sT2}, s{sT0}, 1\ns_and_b32 s{sT2}, s{sT2}, 0x3fff\ns_cmp_eq_u32 s{sT0}, s{sT1}\ns_cselect_b32 s{sTAG}, s{sT2}, s{sT0}")
        a(f"s_lshl_b32 s{sTAGHI}, s{sTAG}, 16")
        vPH = 240
        if B:
            a(f"v_lshrrev_b32 v{t0}, 5, v{vL}\nv_bfe_u32 v{t1}, v{vL}, 2, 2\nv_lshl_add_u32 v{t0}, v{t0}, 2, v{t1}")
            a(f"v_mul_u32_u24 v{t1}, 56, v{t0}\nv_add_u32 v{t1}, v{t1}, v{vCC}")
            a(f"v_add_u32 v{t0}, 24, v{t0}\nv_min_u32 v{t0}, 27, v{t0}\nv_mul_u32_u24 v{t0}, 56, v{t0}\nv_add_u32 v{t0}, v{t0}, v{vCC}")
            a(f"v_add_u32 v{t0}, {WPHI}, v{t0}\nv_add_u32 v{t1}, {WPHI}, v{t1}")
            for u in range(2):
                for sub in range(2):
                    if u == 1 and sub == 1:
                        a(f"ds_read_b64_tr_b16 {vr(vPH+6,2)}, v{t0}")
                    else:
                        a(f"ds_read_b64_tr_b16 {vr(vPH+4*u+2*sub,2)}, v{t1} offset:{(16*u+8*sub)*56}")
            a("s_waitcnt lgkmcnt(0)")
            a(f"v_cndmask_b32 v{vPH+6}, v{vPH+6}, 0, s[{sUP}:{sUP+1}]\nv_cndmask_b32 v{vPH+7}, v{vPH+7}, 0, s[{sUP}:{sUP+1}]")
            PKp, PKm = vWF, vWF+8
            self.feat_B(vK, PKp, PKm, vPH, False)
        else:
            PKp = vWF
            self.feat_A(vK, PKp)
        a(f"v_cndmask_b32 v{vV+12}, v{vV+12}, 1.0, s[{sUP}:{sUP+1}]")
        PV = vU
        for p in range(8): a(f"v_cvt_pk_bf16_f32 v{PV+p}, v{vV+2*p}, v{vV+2*p+1}")
        a(f"v_and_b32 v{t0}, 31, v{vL}\nv_lshrrev_b32 v{t1}, 5, v{vL}")
        a(f"v_and_b32 v{t2}, 7, v{vL}\nv_bfe_u32 v{t3}, v{vL}, 2, 2\nv_lshl_add_u32 v{t2}, v{t2}, 2, v{t3}\nv_xor_b32 v{t2}, v{t2}, v{t1}")
        a(f"v_lshlrev_b32 v{t0}, 8, v{t0}\nv_add_u32 v{t0}, s{sXM}, v{t0}\nv_lshl_add_u32 v{t0}, v{t2}, 3, v{t0}")
        segs = [(0, PKp), (2, PV)] + ([(1, PKm)] if B else [])
        n = 0
        for seg, src in segs:
            for g in range(4):
                c = (seg*8 + 2*g) * 8
                ta = vT + 4 + (n % 8); n += 1
                if c: a(f"v_xor_b32 v{ta}, {c}, v{t0}")
                a(f"ds_write_b64 v{ta if c else t0}, {vr(src+2*g,2)}")
        ra, rb_ = vT+12, vT+13
        a(f"v_lshrrev_b32 v{t0}, 2, v{vL}")
        a(f"v_and_b32 v{t1}, 7, v{t0}\nv_lshrrev_b32 v{t2}, 2, v{t0}\nv_lshl_add_u32 v{t1}, v{t1}, 2, v{t2}")
        a(f"v_and_b32 v{t2}, 3, v{vL}\nv_xor_b32 v{t1}, v{t1}, v{t2}")
        a(f"v_lshlrev_b32 v{t0}, 8, v{t0}\nv_lshl_add_u32 v{t0}, v{t1}, 3, v{t0}\nv_add_u32 v{t0}, {R3}, v{t0}")
        sFT, sET = 78, 79
        if B: a(f"s_and_b32 s{sFT}, s{sWV}, 3\ns_lshr_b32 s{sET}, s{sWV}, 2")
        else: a(f"s_and_b32 s{sFT}, s{sWV}, 1\ns_bfe_u32 s{sET}, s{sWV}, 0x10001")
        a(f"s_lshl_b32 s{sT0}, s{sFT}, 5\ns_lshl_b32 s{sT1}, s{sET}, 5\ns_add_u32 s{sT1}, s{sT1}, 128")
        a(f"v_xor_b32 v{ra}, s{sT0}, v{t0}\nv_xor_b32 v{rb_}, s{sT1}, v{t0}")
        vWOA = vXA
        a(f"v_lshrrev_b32 v{t0}, 4, v{vL}\nv_lshlrev_b32 v{t1}, 2, v{t0}\nv_sub_u32 v{t1}, v{vL}, v{t1}\nv_and_b32 v{t1}, 15, v{t1}\nv_min_u32 v{t1}, 13, v{t1}")
        a(f"v_mul_u32_u24 v{t0}, 896, v{t0}\nv_lshl_add_u32 v{vWOA}, v{t1}, 4, v{t0}")
        a(f"s_and_b32 s{sT0}, s{sH}, 3\ns_mul_i32 s{sT0}, s{sT0}, 224\nv_add_u32 v{vWOA}, s{sT0}, v{vWOA}")
        a("s_waitcnt vmcnt(0) lgkmcnt(0)")
        a("s_barrier")
        self.stamp()
        self.issue_wo(0, vWOA)
        KV = vU + 8
        if not B: a(f"s_cmp_ge_u32 s{sWV}, 4\ns_cbranch_scc1 L_nokv{br}")
        fr = [vK, vK+8, vV, vV+8]
        def rd(st):
            b = fr[st % 4]
            for sub in range(2):
                a(f"ds_read_b64_tr_b16 {vr(b+2*sub,2)}, v{ra} offset:{(32*st+16*sub)*256}")
            for sub in range(2):
                a(f"ds_read_b64_tr_b16 {vr(b+4+2*sub,2)}, v{rb_} offset:{(32*st+16*sub)*256}")
        for st in range(3): rd(st)
        for st in range(8):
            if st + 3 < 8: rd(st+3)
            left = min(7 - st, 3)
            a(f"s_waitcnt lgkmcnt({4*left})")
            b = fr[st % 4]
            a(f"v_mfma_f32_16x16x32_bf16 {vr(KV,4)}, {vr(b,4)}, {vr(b+4,4)}, {'0' if st == 0 else vr(KV,4)}")
        a(f"v_cvt_pk_bf16_f32 v{t0}, v{KV}, v{KV+1}\nv_cvt_pk_bf16_f32 v{t1}, v{KV+2}, v{KV+3}")
        a(f"s_mov_b32 s{sT1}, 0xffff0000")
        a(f"v_mov_b32 v{t2}, s{sTAG}")
        a(f"v_lshl_or_b32 v{KV}, v{t0}, 16, v{t2}\nv_and_or_b32 v{KV+1}, v{t0}, s{sT1}, v{t2}")
        a(f"v_lshl_or_b32 v{KV+2}, v{t1}, 16, v{t2}\nv_and_or_b32 v{KV+3}, v{t1}, s{sT1}, v{t2}")
        a(f"s_lshl_b32 s{sT0}, s{sRB}, 13\ns_add_u32 s{sT0}, s{sT0}, s{sPB}")
        a(f"buffer_store_dwordx4 {vr(KV,4)}, v{vL16}, s[{sWS}:{sWS+3}], s{sT0} offen sc1")
        if not B: a(f"L_nokv{br}:")
        a("s_barrier")
        self.stamp()
        self.issue_wo(1, vWOA)
        Fq = [vWF, vWF+4, vWF+8, vWF+12]
        a(f"s_mov_b32 s{sCR}, s{sROT}")
        for j in range(7):
            self.next_read_chunk()
            for t in range(4): self.wfrag(Fq[t], 2, t)
            for t in range(4):
                a(f"s_waitcnt lgkmcnt({6-2*t})")
                a(f"v_mfma_f32_32x32x16_bf16 {vr(vQ,16)}, {vr(Fq[t],4)}, {vr(vXF+16*j+4*t,4)}, {vr(vQ,16)}")
        self.stamp()
        PQp, PQm, vS = vWF, vWF+8, vXA+1
        if B: self.feat_B(vQ, PQp, PQm, vPH, True, vS)
        else: self.feat_A(vQ, PQp)
        self.stamp()
        a("s_waitcnt vmcnt(0)\ns_barrier")
        wa = [vT+4, vT+5]
        a(f"v_lshrrev_b32 v{t0}, 5, v{vL}\nv_bfe_u32 v{t1}, v{vL}, 2, 2")
        a(f"v_mul_u32_u24 v{t2}, 7, v{t0}\nv_add_u32 v{t2}, v{t2}, v{t1}")
        a(f"s_and_b32 s{sT0}, s{sWV}, 3\ns_mul_i32 s{sT0}, s{sT0}, 56")
        for t in range(2):
            a(f"v_add_u32 v{t3}, {14*t}, v{t2}")
            a(f"v_and_b32 v{t0}, 3, v{t3}\nv_lshlrev_b32 v{t0}, 6, v{t0}\nv_add3_u32 v{t0}, v{t0}, v{vCC}, s{sT0}\nv_and_b32 v{t0}, 255, v{t0}")
            a(f"v_lshl_add_u32 v{wa[t]}, v{t3}, 8, v{t0}")
        a(f"v_add_u32 v{vT+6}, {R3}, v{wa[0]}\nv_add_u32 v{vT+7}, {R3}, v{wa[1]}")
        a(f"s_mov_b32 s{sT1}, 0xffff")
        cnt = 0
        for hh in range(16):
            for t in range(2):
                ad = wa[t] if hh < 8 else vT+6+t
                d = vXF + (hh*2+t)*4
                for sub in range(2):
                    a(f"ds_read_b64_tr_b16 {vr(d+2*sub,2)}, v{ad} offset:{(28*(hh%8)+4*sub)*256}")
            if hh >= 2:
                a("s_waitcnt lgkmcnt(8)")
                for t in range(2): a(f"v_and_b32 v{vXF+((hh-2)*2+t)*4+3}, s{sT1}, v{vXF+((hh-2)*2+t)*4+3}")
        a("s_waitcnt lgkmcnt(0)")
        for hh in (14, 15):
            for t in range(2): a(f"v_and_b32 v{vXF+(hh*2+t)*4+3}, s{sT1}, v{vXF+(hh*2+t)*4+3}")
        self.stamp()
        if not B: a(f"s_cmp_ge_u32 s{sWV}, 4\ns_cbranch_scc1 L_nored{br}")
        a(f"s_mov_b32 s{sRETRY}, 0")
        a(f"L_h1_{br}:")
        G0 = vK
        for p in range(8):
            a(f"s_add_u32 s{sT0}, s{sPB}, {p*8192}")
            a(f"buffer_load_dwordx4 {vr(G0+4*p,4)}, v{vL16}, s[{sWS}:{sWS+3}], s{sT0} offen sc1")
        a(f"s_add_u32 s{sRETRY}, s{sRETRY}, 1")
        mm = vT+8
        for p in range(8):
            a(f"s_waitcnt vmcnt({7-p})")
            for i in range(4): a(f"v_xor_b32 v{G0+4*p+i}, s{sTAG}, v{G0+4*p+i}")
            if p == 0:
                a(f"v_or3_b32 v{mm}, v{G0}, v{G0+1}, v{G0+2}\nv_or_b32 v{mm}, v{mm}, v{G0+3}")
            else:
                a(f"v_or3_b32 v{mm}, v{mm}, v{G0+4*p}, v{G0+4*p+1}\nv_or3_b32 v{mm}, v{mm}, v{G0+4*p+2}, v{G0+4*p+3}")
                for i in range(4): a(f"v_add_f32 v{G0+i}, v{G0+i}, v{G0+4*p+i}")
        a(f"v_and_b32 v{mm}, 0xffff, v{mm}\nv_cmp_ne_u32 vcc, 0, v{mm}")
        a(f"s_cmp_ge_u32 s{sRETRY}, 100000\ns_cbranch_scc1 L_h1x_{br}\ns_cbranch_vccnz L_h1_{br}")
        a(f"L_h1x_{br}:")
        a(f"v_lshrrev_b32 v{t0}, 4, v{vL}")
        a(f"s_and_b32 s{sT0}, s{sFT}, 1\ns_lshl_b32 s{sT0}, s{sT0}, 2\nv_add_u32 v{t1}, s{sT0}, v{t0}\nv_cmp_eq_u32 vcc, 7, v{t1}")
        a(f"v_cvt_pk_bf16_f32 v{G0}, v{G0}, v{G0+1}\nv_cvt_pk_bf16_f32 v{G0+1}, v{G0+2}, v{G0+3}")
        a(f"v_cndmask_b32 v{G0}, v{G0}, 0, vcc\nv_cndmask_b32 v{G0+1}, v{G0+1}, 0, vcc".replace("v_cndmask_b32", "v_cndmask_b32_e64"))
        a(f"v_and_b32 v{t1}, 15, v{vL}\ns_lshl_b32 s{sT0}, s{sET}, 4\nv_add_u32 v{t1}, s{sT0}, v{t1}\nv_mul_u32_u24 v{t1}, 144, v{t1}")
        a(f"v_and_b32 v{t2}, 1, v{t0}\nv_lshrrev_b32 v{t0}, 1, v{t0}\nv_lshlrev_b32 v{t0}, 3, v{t0}\nv_lshl_add_u32 v{t0}, v{t2}, 4, v{t0}")
        a(f"s_lshl_b32 s{sT0}, s{sFT}, 5\ns_add_u32 s{sT0}, s{sT0}, {KVT}\nv_add3_u32 v{t1}, v{t1}, v{t0}, s{sT0}")
        a(f"ds_write_b64 v{t1}, {vr(G0,2)}")
        if not B: a(f"L_nored{br}:")
        a(f"v_and_b32 v{t0}, 3, v{vL}\nv_bfe_u32 v{t1}, v{vL}, 3, 1\nv_lshl_add_u32 v{t0}, v{t1}, 2, v{t0}")
        a(f"v_bfe_u32 v{t1}, v{vL}, 4, 1\nv_bfe_u32 v{t2}, v{vL}, 2, 1\nv_lshl_add_u32 v{t1}, v{t1}, 1, v{t2}")
        a(f"v_mad_u32_u24 v{t1}, v{t1}, 7, v{t0}\nv_cmp_eq_u32 vcc, 7, v{t0}\nv_cndmask_b32_e64 v{t1}, v{t1}, 28, vcc")
        a(f"v_mul_u32_u24 v{t1}, 144, v{t1}\nv_lshrrev_b32 v{t2}, 5, v{vL}\nv_lshl_add_u32 v{t1}, v{t2}, 4, v{t1}\nv_add_u32 v{t1}, {KVT}, v{t1}")
        a("s_waitcnt lgkmcnt(0)\ns_barrier")
        self.stamp()
        nu = 4 if B else 2
        KA = vK
        for u in range(nu): a(f"ds_read_b128 {vr(KA+4*u,4)}, v{t1} offset:{32*u}")
        N = vQ
        for u in range(nu):
            a(f"s_waitcnt lgkmcnt({nu-1-u})")
            a(f"v_mfma_f32_32x32x16_bf16 {vr(N,16)}, {vr(KA+4*u,4)}, {vr(vWF+4*u,4)}, {'0' if u == 0 else vr(N,16)}")
        if B: a(f"v_add_f32 v{t0}, v{N+7}, v{vS}")
        else: a(f"v_add_f32 v{t0}, s{sLOG}, v{N+7}")
        a(f"v_rcp_f32 v{t0}, v{t0}")
        for r in range(16):
            if r % 8 != 7: a(f"v_mul_f32 v{N+r}, v{t0}, v{N+r}")
        OP = vV
        for p in range(8): a(f"v_cvt_pk_bf16_f32 v{OP+p}, v{N+2*p}, v{N+2*p+1}")
        a(f"v_mov_b32 v{t2}, s{sTAGHI}")
        a(f"s_mov_b32 s{sT1}, 0xffff")
        a(f"v_and_or_b32 v{OP+3}, v{OP+3}, s{sT1}, v{t2}\nv_and_or_b32 v{OP+7}, v{OP+7}, s{sT1}, v{t2}")
        a(f"s_lshl_b32 s{sT0}, s{sWV}, 4\ns_add_u32 s{sT0}, s{sT0}, s{sH}\ns_lshl_b32 s{sT0}, s{sT0}, 11\ns_add_u32 s{sT0}, s{sT0}, s{sOB}")
        a(f"buffer_store_dwordx4 {vr(OP,4)}, v{vL16}, s[{sWS}:{sWS+3}], s{sT0} offen sc1")
        a(f"buffer_store_dwordx4 {vr(OP+4,4)}, v{vL16}, s[{sWS}:{sWS+3}], s{sT0} offen offset:1024 sc1")
        a("s_waitcnt vmcnt(0)")
        self.stamp()
        sOS, sOM = sXB, sWB
        a(f"s_lshr_b32 s{sT0}, s{sWV}, 2\ns_lshl_b32 s{sT0}, s{sT0}, 4\ns_and_b32 s{sT1}, s{sWV}, 3\ns_add_u32 s{sT0}, s{sT0}, s{sT1}\ns_lshl_b32 s{sT0}, s{sT0}, 11")
        a(f"s_add_u32 s{sOM}, s{sT0}, {R3}")
        a(f"s_lshr_b32 s{sT1}, s{sH}, 2\ns_lshl_b32 s{sT1}, s{sT1}, 16\ns_add_u32 s{sOS}, s{sT0}, s{sT1}\ns_add_u32 s{sOS}, s{sOS}, s{sOB}")
        def odma(q):
            a(f"s_add_u32 m0, s{sOM}, {q*8192}\ns_add_u32 s{sT0}, s{sOS}, {q*8192}")
            a(f"buffer_load_dwordx4 v{vL16}, s[{sWS}:{sWS+3}], s{sT0} offen sc1 lds")
            a(f"buffer_load_dwordx4 v{vL16}, s[{sWS}:{sWS+3}], s{sT0} offen offset:1024 sc1 lds")
        for q in range(4): odma(q)
        vCK, vOR = vT+4, vT+5
        a(f"v_add_u32 v{vCK}, s{sOM}, v{vL16}")
        a(f"s_lshr_b32 s{sT0}, s{sWV}, 2\ns_lshl_b32 s{sT0}, s{sT0}, 15\ns_add_u32 s{sT0}, s{sT0}, {R3}\nv_add_u32 v{vOR}, s{sT0}, v{vL16}")
        ACC = vK
        OF = [vU, vU+4, vU+8, vU+12]
        for q in range(4):
            a(f"s_mov_b32 s{sRETRY}, 0")
            a(f"s_waitcnt vmcnt({6-2*q})")
            a(f"L_h2_{br}_{q}:")
            a(f"ds_read_b32 v{t0}, v{vCK} offset:{q*8192+12}\nds_read_b32 v{t1}, v{vCK} offset:{q*8192+1024+12}")
            a("s_waitcnt lgkmcnt(0)")
            a(f"v_xor_b32 v{t0}, s{sTAGHI}, v{t0}\nv_xor_b32 v{t1}, s{sTAGHI}, v{t1}\nv_or_b32 v{t0}, v{t0}, v{t1}")
            a(f"v_cmp_lt_u32 vcc, 0xffff, v{t0}")
            a(f"s_cbranch_vccz L_h2x_{br}_{q}")
            a(f"s_add_u32 s{sRETRY}, s{sRETRY}, 1\ns_cmp_ge_u32 s{sRETRY}, 100000\ns_cbranch_scc1 L_h2x_{br}_{q}")
            odma(q)
            a(f"s_waitcnt vmcnt(0)\ns_branch L_h2_{br}_{q}")
            a(f"L_h2x_{br}_{q}:")
            a("s_barrier")
            for i in range(3): a(f"ds_read_b128 {vr(OF[i],4)}, v{vOR} offset:{(q*8+i)*1024}")
            for i in range(8):
                if i + 3 < 8: a(f"ds_read_b128 {vr(OF[(i+3)%4],4)}, v{vOR} offset:{(q*8+i+3)*1024}")
                a(f"s_waitcnt lgkmcnt({min(7-i,3)})")
                ks = q*8 + i
                a(f"v_mfma_f32_32x32x16_bf16 {vr(ACC,16)}, {vr(vXF+4*ks,4)}, {vr(OF[i%4],4)}, {'0' if ks == 0 else vr(ACC,16)}")
        self.stamp()
        a(f"s_or_b32 s{sT0}, s{sH}, s{sRB}\ns_or_b32 s{sT0}, s{sT0}, s{sWV}\ns_cmp_eq_u32 s{sT0}, 0\ns_cbranch_scc0 L_noe{br}")
        a(f"s_or_b32 s{sT0}, s{sTAG}, s{sTAGHI}\nv_mov_b32 v{t0}, s{sT0}\nv_mov_b32 v{t1}, {E_OFF + br*256}")
        a(f"buffer_store_dword v{t0}, v{t1}, s[{sWS}:{sWS+3}], 0 offen sc1")
        a(f"L_noe{br}:")
        a(f"v_and_b32 v{t0}, 31, v{vL}\nv_lshrrev_b32 v{t1}, 5, v{vL}\nv_mul_u32_u24 v{t0}, {OUTP}, v{t0}\nv_lshl_add_u32 v{t0}, v{t1}, 3, v{t0}")
        a(f"s_lshr_b32 s{sT0}, s{sWV}, 2\ns_mul_i32 s{sT0}, s{sT0}, {32*OUTP}\ns_and_b32 s{sT1}, s{sWV}, 3\ns_mul_i32 s{sT1}, s{sT1}, 56\ns_add_u32 s{sT0}, s{sT0}, s{sT1}")
        a(f"v_add_u32 v{t0}, s{sT0}, v{t0}")
        for p in range(8): a(f"v_cvt_pk_bf16_f32 v{vV+p}, v{ACC+2*p}, v{ACC+2*p+1}")
        for g in range(3): a(f"ds_write_b64 v{t0}, {vr(vV+2*g,2)} offset:{R1+16*g}")
        a(f"s_mov_b32 exec_hi, 0")
        a(f"ds_write_b64 v{t0}, {vr(vV+6,2)} offset:{R1+48}")
        a(f"s_mov_b32 exec_hi, -1")
        a(f"s_mov_b32 s{sT1}, 4682")
        for k in range(2):
            a(f"v_add_u32 v{t1}, {512*k}, v0")
            a(f"v_mul_u32_u24 v{t2}, s{sT1}, v{t1}\nv_lshrrev_b32 v{t2}, 16, v{t2}")
            a(f"v_mul_u32_u24 v{t3}, 14, v{t2}\nv_sub_u32 v{t3}, v{t1}, v{t3}\nv_lshlrev_b32 v{t3}, 4, v{t3}")
            a(f"v_mad_u32_u24 v{vT+8+k}, v{t2}, s{sC+0 if False else sT2}, v{t3}" if False else f"v_mul_u32_u24 v{vT+8+k}, {OUTP}, v{t2}")
            a(f"v_add_u32 v{vT+8+k}, v{vT+8+k}, v{t3}")
            a(f"v_mul_u32_u24 v{vT+10+k}, 1792, v{t2}\nv_add_u32 v{vT+10+k}, v{vT+10+k}, v{t3}")
        a(f"s_lshl_b32 s{sT0}, s{sRB}, 2\ns_lshr_b32 s{sT1}, s{sH}, 2\ns_add_u32 s{sT0}, s{sT0}, s{sT1}\ns_mul_i32 s{sT0}, s{sT0}, {64*1792}")
        a(f"s_and_b32 s{sT1}, s{sH}, 3\ns_mul_i32 s{sT1}, s{sT1}, 224\ns_add_u32 s{sT0}, s{sT0}, s{sT1}\ns_add_u32 s{sT0}, s{sT0}, {br*896}")
        a("s_waitcnt lgkmcnt(0)\ns_barrier")
        a(f"ds_read_b128 {vr(vQ,4)}, v{vT+8} offset:{R1}")
        a(f"s_cmp_ge_u32 s{sWV}, 6\ns_cbranch_scc1 L_st1_{br}")
        a(f"ds_read_b128 {vr(vQ+4,4)}, v{vT+9} offset:{R1}")
        a("s_waitcnt lgkmcnt(0)")
        a(f"buffer_store_dwordx4 {vr(vQ+4,4)}, v{vT+11}, s[{sOUT}:{sOUT+3}], s{sT0} offen")
        a(f"L_st1_{br}:")
        a("s_waitcnt lgkmcnt(0)")
        a(f"buffer_store_dwordx4 {vr(vQ,4)}, v{vT+10}, s[{sOUT}:{sOUT+3}], s{sT0} offen")
        if self.stamps:
            a("s_waitcnt vmcnt(0)")
            self.stamp()
            a(f"s_cmp_eq_u32 s{sWV}, 0\ns_cbranch_scc0 L_end")
            a(f"s_mov_b64 exec, 1\ns_lshl_b32 s{sT0}, s2, 6\ns_add_u32 s{sT0}, s{sT0}, {S_OFF}\nv_mov_b32 v{t1}, 0")
            for i in range(self.ns):
                a(f"v_mov_b32 v{t0}, s{sST+i}\nbuffer_store_dword v{t0}, v{t1}, s[{sWS}:{sWS+3}], s{sT0} offen offset:{4*i}")
            if self.stamps == 2:
                a(f"s_mov_b32 s{sX}, s52\ns_mov_b32 s{sX+1}, s53\ns_mov_b32 s{sX+2}, 256")
                a(f"s_not_b32 s{sT0}, s{sST}\nv_mov_b32 v{t0}, s{sT0}\nbuffer_atomic_umax v{t0}, v{t1}, s[{sX}:{sX+3}], 0 offen sc1")
                a(f"v_mov_b32 v{t2}, s{sST+self.ns-1}\nbuffer_atomic_umax v{t2}, v{t1}, s[{sX}:{sX+3}], 0 offen offset:4 sc1")
                a(f"s_cmp_eq_u32 s2, 0\ns_cbranch_scc0 L_end")
                for i in range(self.ns):
                    a(f"s_sub_u32 s{sT0}, s{sST+i}, s{sST}\nv_mov_b32 v{t3}, s{sT0}\nbuffer_store_dword v{t3}, v{t1}, s[{sX}:{sX+3}], 0 offen offset:{8+4*i}")
        a("s_endpgm")

    def build(self):
        a = self.a
        self.prologue()
        self.branch(1)
        a("L_A:")
        self.branch(0)
        a("L_end:\ns_endpgm")
        body = a.finish()
        src = open(f"cdna_kernels/{NAME}.s.ref").read().split("\n")
        hdr = [l for l in src if l.startswith(";") and "@launch" not in l and l.startswith("; ") and ("offset" in l or "Kernarg" in l)]
        out = "\n".join(hdr) + "\n"
        out += f"; @launch grid=(256,1,1) block=(512,1,1) lds={LDS_BYTES}\n"
        out += f'.amdgcn_target "amdgcn-amd-amdhsa--gfx950"\n.text\n.globl {KN}\n.p2align 8\n.type {KN},@function\n{KN}:\n'
        out += body
        out += f'''.section .rodata,"a"
.p2align 6
.amdhsa_kernel {KN}
  .amdhsa_next_free_vgpr 256
  .amdhsa_next_free_sgpr 102
  .amdhsa_accum_offset 256
  .amdhsa_group_segment_fixed_size 0
  .amdhsa_kernarg_size 80
  .amdhsa_user_sgpr_count 2
  .amdhsa_user_sgpr_kernarg_segment_ptr 1
  .amdhsa_system_sgpr_workgroup_id_x 1
.end_amdhsa_kernel
'''
        return out

if __name__ == "__main__":
    open("k1.s", "w").write(G(False).build())
    open("k1_st.s", "w").write(G(True).build())
    open("k1_dbg.s", "w").write(G(2).build())
```

```python
import sys
from asmdsl import Asm

NAME = "concat_heads__linear_attn_block__linear_kernel_hedgehog__prompt"
KN = NAME + "_kernel"

PART = 28672
R1 = 0
R2 = 2 * PART
R3 = 3 * PART
R4 = R3 + 65536
WPHI = R4
KVT = R4 + 2048
LDS_BYTES = 163840
OUTP = 240

E_OFF = 0x0
X_OFF = 0x10000
P_OFF = 0x100000
O_OFF = 0x400000
S_OFF = 0x1000000

sX, sW, sWO, sWS, sOUT, sPH = 8, 12, 16, 20, 24, 28
sWV, sH, sRB, sROT = 32, 33, 34, 35
sTAG, sTAGHI = 56, 57
sXB = 58
sWB = 59
sWM = 60
sXM = 61
sCI = 62
sCR = 63
sT0, sT1, sT2, sT3 = 64, 65, 66, 67
sPB = 68
sOB = 69
sUP = 70
sRETRY = 72
sC = 73
sLOG = 74
sSV = 76
sST = 80

vL = 1
vXA = 2
vWA = 6
vXR = 7
vWR0 = 11
vWR = 12
vL16 = 13
vE = 14
vT = 16
vWF = 48
vK = 64; vV = 80; vQ = 96
vU = 112
vXF = 128

LOG2E = 0x3fb8aa3b
EPS = 0x358637bd

def vr(b, n): return f"v[{b}:{b+n-1}]"

class G:
    def __init__(self, stamps=False, fast=False, amp=None):
        self.a = Asm(); self.stamps = stamps; self.ns = 0; self.fast = fast; self.amp = amp
    def stamp(self):
        if not self.stamps: return
        a = self.a
        a(f"s_memrealtime s[{sSV}:{sSV+1}]\ns_waitcnt lgkmcnt(0)\ns_mov_b32 s{sST+self.ns}, s{sSV}")
        self.ns += 1

    def prologue(self):
        a = self.a
        if self.stamps: a(f"s_memrealtime s[{sST}:{sST+1}]")
        a("s_cmp_ge_u32 s2, 256\ns_cbranch_scc1 L_end")
        a("s_load_dwordx16 s[36:51], s[0:1], 0")
        a("s_load_dwordx4 s[52:55], s[0:1], 64")
        a(f"v_lshrrev_b32 v{vT}, 6, v0")
        a(f"v_and_b32 v{vL}, 63, v0")
        a(f"v_readfirstlane_b32 s{sWV}, v{vT}")
        a(f"s_lshr_b32 s{sT0}, s2, 3")
        a(f"s_and_b32 s{sH}, s{sT0}, 15")
        a(f"s_and_b32 s{sT1}, s2, 3\ns_lshl_b32 s{sT1}, s{sT1}, 1\ns_lshr_b32 s{sT2}, s{sT0}, 4\ns_add_u32 s{sRB}, s{sT1}, s{sT2}")
        a(f"s_mul_i32 s{sT1}, s{sT0}, 37\ns_lshr_b32 s{sT1}, s{sT1}, 8\ns_mul_i32 s{sT1}, s{sT1}, 7\ns_sub_u32 s{sROT}, s{sT0}, s{sT1}")
        a(f"v_lshrrev_b32 v{vT}, 3, v{vL}")
        a(f"v_mul_u32_u24 v{vT}, 896, v{vT}")
        a(f"v_and_b32 v{vT+1}, 7, v{vL}\nv_lshrrev_b32 v{vT+2}, 4, v{vL}\nv_xor_b32 v{vT+1}, v{vT+1}, v{vT+2}")
        a(f"v_lshl_add_u32 v{vXA}, v{vT+1}, 4, v{vT}")
        a(f"v_xor_b32 v{vT+1}, 4, v{vT+1}")
        a(f"v_lshl_add_u32 v{vXA+1}, v{vT+1}, 4, v{vT}")
        a(f"v_add_u32 v{vXA+2}, {2*6144}, v{vXA}")
        a(f"v_add_u32 v{vXA+3}, {3*6144}, v{vXA+1}")
        a(f"v_add_u32 v{vXA+1}, 6144, v{vXA+1}")
        a(f"v_lshrrev_b32 v{vT}, 2, v{vL}\nv_mul_u32_u24 v{vT}, 2688, v{vT}\nv_and_b32 v{vT+1}, 3, v{vL}")
        a(f"v_lshl_add_u32 v{vWA}, v{vT+1}, 4, v{vT}")
        a(f"s_mul_i32 s{sT1}, s{sH}, 56\ns_and_b32 s{sT1}, s{sT1}, 0xfffffff0")
        a(f"v_add_u32 v{vWA}, s{sT1}, v{vWA}")
        a(f"s_lshl_b32 s{sT1}, s{sRB}, 3\ns_add_u32 s{sT1}, s{sT1}, s{sWV}\ns_mul_i32 s{sXB}, s{sT1}, {32*896}")
        a(f"s_lshr_b32 s{sT1}, s{sWV}, 2\ns_and_b32 s{sT2}, s{sWV}, 3")
        a(f"s_mul_i32 s{sWB}, s{sT1}, 896\ns_add_u32 s{sWB}, s{sWB}, 896\ns_mul_i32 s{sT3}, s{sT2}, {16*2688}\ns_add_u32 s{sWB}, s{sWB}, s{sT3}")
        a(f"s_mul_i32 s{sWM}, s{sT1}, {PART}\ns_lshl_b32 s{sT3}, s{sT2}, 10\ns_add_u32 s{sWM}, s{sWM}, s{sT3}")
        a(f"s_lshl_b32 s{sXM}, s{sWV}, 13\ns_add_u32 s{sXM}, s{sXM}, {R3}")
        a(f"s_mov_b32 s{sCI}, s{sROT}\ns_mov_b32 s{sCR}, s{sROT}")
        a(f"s_mov_b32 s{sX+2}, 1835008\ns_mov_b32 s{sX+3}, 0x20000")
        a(f"s_mov_b32 s{sW+2}, 1204224\ns_mov_b32 s{sW+3}, 0x20000")
        a(f"s_mov_b32 s{sWS+2}, 0x10000000\ns_mov_b32 s{sWS+3}, 0x20000")
        a("s_bitcmp1_b32 s2, 2")
        a("s_cbranch_scc1 L_A")

    def issue_chunk(self, slot):
        a = self.a
        a(f"s_lshl_b32 s{sT0}, s{sCI}, 7\ns_add_u32 s{sT0}, s{sT0}, s{sXB}")
        a(f"s_mul_i32 s{sT1}, s{sCI}, {64*2688}\ns_add_u32 s{sT1}, s{sT1}, s{sWB}")
        a(f"s_lshl_b32 s{sT2}, s{sCI}, 12\ns_add_u32 m0, s{sT2}, s{sWM}")
        a(f"s_add_u32 s{sCI}, s{sCI}, 1")
        a(f"buffer_load_dwordx4 v{vWA}, s[{sW}:{sW+3}], s{sT1} offen lds")
        a(f"s_add_u32 m0, s{sXM}, {slot*4096}")
        a(f"s_cmp_eq_u32 s{sCI}, 7")
        for i in range(4):
            a(f"buffer_load_dwordx4 v{vXA+i}, s[{sX}:{sX+3}], s{sT0} offen offset:{i*1024} lds")
        a(f"s_cselect_b32 s{sCI}, 0, s{sCI}")

    def issue_wq(self, m):
        a = self.a
        a(f"s_add_u32 s{sT0}, s{sWV}, {8*m}")
        if m == 3: a(f"s_cmp_ge_u32 s{sT0}, 28\ns_cbranch_scc1 L_wq_skip{self.br}")
        a(f"s_mul_i32 s{sT1}, s{sT0}, {16*2688}")
        a(f"s_lshl_b32 s{sT0}, s{sT0}, 10\ns_add_u32 m0, s{sT0}, {R2}\ns_nop 0")
        a(f"buffer_load_dwordx4 v{vWA}, s[{sW}:{sW+3}], s{sT1} offen lds")
        if m == 3: a(f"L_wq_skip{self.br}:")

    def issue_wo(self, half, vA):
        a = self.a
        reg = R1 if half == 0 else R3
        a(f"s_mul_i32 s{sT0}, s{sWV}, {7*3584}\ns_add_u32 s{sT0}, s{sT0}, {half*224*896}")
        a(f"s_mul_i32 s{sT1}, s{sWV}, {7*1024}\ns_add_u32 s{sT1}, s{sT1}, {reg}")
        for mm in range(7):
            a(f"s_add_u32 m0, s{sT1}, {mm*1024}")
            a(f"s_add_u32 s{sT2}, s{sT0}, {mm*3584}")
            a(f"buffer_load_dwordx4 v{vA}, s[{sWO}:{sWO+3}], s{sT2} offen lds")

    def wfrag(self, dst, part, t):
        a = self.a
        for sub in range(2):
            a(f"ds_read_b64_tr_b16 {vr(dst+2*sub, 2)}, v{vWR} offset:{part*PART + t*1024 + sub*256}")

    def next_read_chunk(self):
        a = self.a
        a(f"s_lshl_b32 s{sT3}, s{sCR}, 12\ns_add_u32 s{sCR}, s{sCR}, 1\ns_cmp_eq_u32 s{sCR}, 7\ns_cselect_b32 s{sCR}, 0, s{sCR}")
        a(f"v_add_u32 v{vWR}, s{sT3}, v{vWR0}")

    def feat_A(self, acc, dst):
        a = self.a
        for r in range(16): a(f"v_mul_f32 v{vT+r}, s{sC}, v{acc+r}")
        for r in range(16): a(f"v_exp_f32 v{vT+r}, v{vT+r} clamp")
        for r in range(16): a(f"v_max_f32 v{acc+r}, s{sLOG}, v{acc+r}")
        for r in range(16): a(f"v_add_f32 v{acc+r}, v{acc+r}, v{vT+r}")
        for p in range(8): a(f"v_cvt_pk_bf16_f32 v{dst+p}, v{acc+2*p}, v{acc+2*p+1}")

    def feat_B(self, acc, dstp, dstm, vPH, isq, vS=None):
        a = self.a
        P = vU
        for p in range(8): a(f"v_cvt_pk_bf16_f32 v{vT+p}, v{acc+2*p}, v{acc+2*p+1}")
        a(f"v_mfma_f32_32x32x16_bf16 {vr(P,16)}, {vr(vPH,4)}, {vr(vT,4)}, 0")
        a(f"v_mfma_f32_32x32x16_bf16 {vr(P,16)}, {vr(vPH+4,4)}, {vr(vT+4,4)}, {vr(P,16)}")
        m1, m2, t1 = vT+8, vT+9, vT+10
        a(f"v_max3_f32 v{m1}, v{P}, v{P+1}, v{P+2}")
        a(f"v_max3_f32 v{m2}, -v{P}, -v{P+1}, -v{P+2}")
        for r in range(3, 15, 2):
            a(f"v_max3_f32 v{m1}, v{m1}, v{P+r}, v{P+r+1}")
            a(f"v_max3_f32 v{m2}, v{m2}, -v{P+r}, -v{P+r+1}")
        a(f"v_max_f32 v{m1}, v{m1}, v{P+15}")
        a(f"v_max_f32_e64 v{m2}, v{m2}, -v{P+15}")
        a(f"v_permlane32_swap_b32 v{m1}, v{m2}")
        a(f"v_max_f32 v{m1}, v{m1}, v{m2}")
        a(f"v_mul_f32 v{m1}, s{sC}, v{m1}")
        a(f"v_mov_b32 v{m2}, v{m1}")
        a(f"v_permlane32_swap_b32 v{m1}, v{m2}")
        Ep = acc; Em = vT + 16
        for r in range(16):
            a(f"v_fma_f32 v{Ep+r}, s{sC}, v{P+r}, -v{m1}")
            a(f"v_fma_f32 v{Em+r}, -s{sC}, v{P+r}, -v{m2}")
        for r in range(16):
            a(f"v_exp_f32 v{Ep+r}, v{Ep+r}")
            a(f"v_exp_f32 v{Em+r}, v{Em+r}")
        s1, s2, s3, s4 = vT+8, vT+9, vT+10, vT+11
        a(f"v_add_f32 v{s3}, v{Ep+12}, v{Ep+13}\nv_add_f32 v{s4}, v{Em+12}, v{Em+13}")
        a(f"v_add_f32 v{s1}, v{Ep}, v{Ep+1}\nv_add_f32 v{s2}, v{Em}, v{Em+1}")
        a(f"v_add_f32 v{s3}, v{s3}, v{Ep+14}\nv_add_f32 v{s4}, v{s4}, v{Em+14}")
        a(f"v_add_f32 v{s1}, v{s1}, v{Ep+2}\nv_add_f32 v{s2}, v{s2}, v{Em+2}")
        a(f"v_add_f32 v{s3}, v{s3}, v{Ep+15}\nv_add_f32 v{s4}, v{s4}, v{Em+15}")
        a(f"v_add_f32 v{s1}, v{s1}, v{Ep+3}\nv_add_f32 v{s2}, v{s2}, v{Em+3}")
        a(f"v_cndmask_b32 v{s3}, v{s3}, 0, s[{sUP}:{sUP+1}]\nv_cndmask_b32 v{s4}, v{s4}, 0, s[{sUP}:{sUP+1}]")
        for r in range(4, 12, 2):
            a(f"v_add_f32 v{s1}, v{s1}, v{Ep+r}\nv_add_f32 v{s2}, v{s2}, v{Em+r}")
            a(f"v_add_f32 v{s3}, v{s3}, v{Ep+r+1}\nv_add_f32 v{s4}, v{s4}, v{Em+r+1}")
        a(f"v_add_f32 v{s1}, v{s1}, v{s3}\nv_add_f32 v{s2}, v{s2}, v{s4}")
        a(f"v_permlane32_swap_b32 v{s1}, v{s2}")
        a(f"v_add_f32 v{s1}, v{s1}, v{s2}")
        if not isq:
            a(f"v_rcp_f32 v{s1}, v{s1}")
            a(f"s_nop 0\nv_mov_b32 v{s2}, v{s1}")
            a(f"v_permlane32_swap_b32 v{s1}, v{s2}")
            for r in range(16):
                a(f"v_mul_f32 v{Ep+r}, v{s1}, v{Ep+r}")
                a(f"v_mul_f32 v{Em+r}, v{s2}, v{Em+r}")
        else:
            a(f"v_mov_b32 v{s2}, v{s1}")
            a(f"v_permlane32_swap_b32 v{s1}, v{s2}")
            a(f"v_rcp_f32 v{s2}, v{s2}")
            a(f"v_mul_f32 v{vS}, s{sLOG}, v{s1}")
            a(f"v_mul_f32 v{s2}, v{s1}, v{s2}")
            for r in range(16):
                a(f"v_mul_f32 v{Em+r}, v{s2}, v{Em+r}")
        for p in range(8):
            a(f"v_cvt_pk_bf16_f32 v{dstp+p}, v{Ep+2*p}, v{Ep+2*p+1}")
        for p in range(8):
            a(f"v_cvt_pk_bf16_f32 v{dstm+p}, v{Em+2*p}, v{Em+2*p+1}")

    def branch(self, br):
        a = self.a; self.br = br; self.ns = 1
        B = (br == 1)
        px, pw, pwo = (42, 44, 48) if B else (36, 38, 40)
        a("s_waitcnt lgkmcnt(0)")
        a(f"s_mov_b32 s{sX}, s{px}\ns_mov_b32 s{sX+1}, s{px+1}\ns_mov_b32 s{sW}, s{pw}\ns_mov_b32 s{sW+1}, s{pw+1}")
        a(f"s_mov_b32 s{sWS}, s54\ns_mov_b32 s{sWS+1}, s55")
        self.issue_chunk(0)
        a(f"v_mov_b32 v{vT}, {E_OFF + br*256}")
        a(f"buffer_load_dword v{vE}, v{vT}, s[{sWS}:{sWS+3}], 0 offen sc1")
        if B:
            a(f"s_mov_b32 s{sPH}, s46\ns_mov_b32 s{sPH+1}, s47\ns_mov_b32 s{sPH+2}, 25088\ns_mov_b32 s{sPH+3}, 0x20000")
            a(f"v_lshlrev_b32 v{vL16}, 4, v{vL}")
            a(f"s_cmp_ge_u32 s{sWV}, 2\ns_cbranch_scc1 L_noph")
            a(f"s_lshl_b32 s{sT0}, s{sWV}, 10\ns_add_u32 m0, s{sT0}, {WPHI}\ns_mul_i32 s{sT1}, s{sH}, 1568\ns_add_u32 s{sT1}, s{sT1}, s{sT0}")
            a(f"buffer_load_dwordx4 v{vL16}, s[{sPH}:{sPH+3}], s{sT1} offen lds")
            a("L_noph:")
        else:
            a(f"v_lshlrev_b32 v{vL16}, 4, v{vL}")
        self.issue_chunk(1)
        a(f"s_mov_b32 s{sWO}, s{pwo}\ns_mov_b32 s{sWO+1}, s{pwo+1}\ns_mov_b32 s{sWO+2}, 401408\ns_mov_b32 s{sWO+3}, 0x20000")
        a(f"s_mov_b32 s{sOUT}, s50\ns_mov_b32 s{sOUT+1}, s51\ns_mov_b32 s{sOUT+2}, 3670016\ns_mov_b32 s{sOUT+3}, 0x20000")
        a(f"s_mov_b32 s{sUP}, 0\ns_mov_b32 s{sUP+1}, -1\ns_mov_b32 s{sC}, {LOG2E:#x}\ns_mov_b32 s{sLOG}, {EPS:#x}")
        t0, t1, t2, t3 = vT, vT+1, vT+2, vT+3
        a(f"v_and_b32 v{t0}, 31, v{vL}\nv_lshrrev_b32 v{t1}, 5, v{vL}")
        a(f"v_bfe_u32 v{t2}, v{vL}, 1, 3\nv_xor_b32 v{t2}, v{t2}, v{t1}")
        a(f"v_lshlrev_b32 v{t3}, 7, v{t0}\nv_add_u32 v{t3}, s{sXM}, v{t3}")
        a(f"v_lshl_add_u32 v{vXR}, v{t2}, 4, v{t3}")
        for t in range(1, 4): a(f"v_xor_b32 v{vXR+t}, {32*t}, v{vXR}")
        a(f"v_bfe_u32 v{t2}, v{vL}, 2, 2\nv_lshl_add_u32 v{t2}, v{t1}, 3, v{t2}\nv_lshlrev_b32 v{t2}, 6, v{t2}")
        a(f"v_bfe_u32 v{t3}, v{vL}, 4, 1\nv_and_b32 v{t0}, 3, v{vL}\nv_lshl_add_u32 v{t3}, v{t3}, 2, v{t0}\nv_min_u32 v{t3}, 6, v{t3}")
        vCC = 15
        a(f"v_lshlrev_b32 v{vCC}, 3, v{t3}")
        a(f"s_and_b32 s{sT0}, s{sH}, 1\ns_lshl_b32 s{sT0}, s{sT0}, 3")
        a(f"v_add3_u32 v{vWR0}, v{t2}, v{vCC}, s{sT0}")
        for r in range(16):
            a(f"v_mov_b32 v{vK+r}, {'0' if B else 's%d' % sLOG}")
            a(f"v_mov_b32 v{vQ+r}, {'0' if B else 's%d' % sLOG}")
            a(f"v_mov_b32 v{vV+r}, 0")
        a(f"s_lshl_b32 s{sPB}, s{sH}, 16\ns_add_u32 s{sPB}, s{sPB}, {P_OFF + br*16*65536}\ns_lshl_b32 s{sT0}, s{sWV}, 10\ns_add_u32 s{sPB}, s{sPB}, s{sT0}")
        a(f"s_lshl_b32 s{sOB}, s{sRB}, 18\ns_add_u32 s{sOB}, s{sOB}, {O_OFF + br*8*262144}")
        self.stamp()
        F0k, F0v, F1k, F1v = vWF, vWF+4, vWF+8, vWF+12
        for j in range(7):
            slot = j & 1
            self.next_read_chunk()
            a(f"s_waitcnt vmcnt({5 if j < 5 else (5 if j == 5 else 2)})")
            a("s_barrier")
            for t in range(4):
                a(f"ds_read_b128 {vr(vXF+16*j+4*t,4)}, v{vXR+t} offset:{slot*4096}")
            self.wfrag(F0k, 0, 0); self.wfrag(F0v, 1, 0)
            self.wfrag(F1k, 0, 1); self.wfrag(F1v, 1, 1)
            a("s_waitcnt lgkmcnt(8)")
            if j < 5: self.issue_chunk(slot)
            elif j == 5: self.issue_wq(0); self.issue_wq(1)
            else: self.issue_wq(2); self.issue_wq(3)
            for t in range(4):
                fk, fv = (F0k, F0v) if t % 2 == 0 else (F1k, F1v)
                a(f"s_waitcnt lgkmcnt({4 if t < 3 else 0})")
                xf = vr(vXF+16*j+4*t, 4)
                a(f"v_mfma_f32_32x32x16_bf16 {vr(vK,16)}, {vr(fk,4)}, {xf}, {vr(vK,16)}")
                a(f"v_mfma_f32_32x32x16_bf16 {vr(vV,16)}, {vr(fv,4)}, {xf}, {vr(vV,16)}")
                if t < 2:
                    self.wfrag(fk, 0, t+2); self.wfrag(fv, 1, t+2)
        self.stamp()
        a(f"v_readfirstlane_b32 s{sT0}, v{vE}")
        a(f"s_lshr_b32 s{sT1}, s{sT0}, 16\ns_add_u32 s{sT0}, s{sT0}, 1\ns_and_b32 s{sT0}, s{sT0}, 0x3fff")
        a(f"s_add_u32 s{sT2}, s{sT0}, 1\ns_and_b32 s{sT2}, s{sT2}, 0x3fff\ns_cmp_eq_u32 s{sT0}, s{sT1}\ns_cselect_b32 s{sTAG}, s{sT2}, s{sT0}")
        a(f"s_lshl_b32 s{sTAGHI}, s{sTAG}, 16")
        vPH = 240
        if B:
            a(f"v_lshrrev_b32 v{t0}, 5, v{vL}\nv_bfe_u32 v{t1}, v{vL}, 2, 2\nv_lshl_add_u32 v{t0}, v{t0}, 2, v{t1}")
            a(f"v_mul_u32_u24 v{t1}, 56, v{t0}\nv_add_u32 v{t1}, v{t1}, v{vCC}")
            a(f"v_add_u32 v{t0}, 24, v{t0}\nv_min_u32 v{t0}, 27, v{t0}\nv_mul_u32_u24 v{t0}, 56, v{t0}\nv_add_u32 v{t0}, v{t0}, v{vCC}")
            a(f"v_add_u32 v{t0}, {WPHI}, v{t0}\nv_add_u32 v{t1}, {WPHI}, v{t1}")
            for u in range(2):
                for sub in range(2):
                    if u == 1 and sub == 1:
                        a(f"ds_read_b64_tr_b16 {vr(vPH+6,2)}, v{t0}")
                    else:
                        a(f"ds_read_b64_tr_b16 {vr(vPH+4*u+2*sub,2)}, v{t1} offset:{(16*u+8*sub)*56}")
            a("s_waitcnt lgkmcnt(0)")
            a(f"v_cndmask_b32 v{vPH+6}, v{vPH+6}, 0, s[{sUP}:{sUP+1}]\nv_cndmask_b32 v{vPH+7}, v{vPH+7}, 0, s[{sUP}:{sUP+1}]")
            PKp, PKm = vWF, vWF+8
            self.feat_B(vK, PKp, PKm, vPH, False)
        else:
            PKp = vWF
            self.feat_A(vK, PKp)
        a(f"v_cndmask_b32 v{vV+12}, v{vV+12}, 1.0, s[{sUP}:{sUP+1}]")
        PV = vU
        for p in range(8): a(f"v_cvt_pk_bf16_f32 v{PV+p}, v{vV+2*p}, v{vV+2*p+1}")
        a(f"v_and_b32 v{t0}, 31, v{vL}\nv_lshrrev_b32 v{t1}, 5, v{vL}")
        a(f"v_and_b32 v{t2}, 7, v{vL}\nv_bfe_u32 v{t3}, v{vL}, 2, 2\nv_lshl_add_u32 v{t2}, v{t2}, 2, v{t3}\nv_xor_b32 v{t2}, v{t2}, v{t1}")
        a(f"v_lshlrev_b32 v{t0}, 8, v{t0}\nv_add_u32 v{t0}, s{sXM}, v{t0}\nv_lshl_add_u32 v{t0}, v{t2}, 3, v{t0}")
        segs = [(0, PKp), (2, PV)] + ([(1, PKm)] if B else [])
        n = 0
        for seg, src in segs:
            for g in range(4):
                c = (seg*8 + 2*g) * 8
                ta = vT + 4 + (n % 8); n += 1
                if c: a(f"v_xor_b32 v{ta}, {c}, v{t0}")
                a(f"ds_write_b64 v{ta if c else t0}, {vr(src+2*g,2)}")
        ra, rb_ = vT+12, vT+13
        a(f"v_lshrrev_b32 v{t0}, 2, v{vL}")
        a(f"v_and_b32 v{t1}, 7, v{t0}\nv_lshrrev_b32 v{t2}, 2, v{t0}\nv_lshl_add_u32 v{t1}, v{t1}, 2, v{t2}")
        a(f"v_and_b32 v{t2}, 3, v{vL}\nv_xor_b32 v{t1}, v{t1}, v{t2}")
        a(f"v_lshlrev_b32 v{t0}, 8, v{t0}\nv_lshl_add_u32 v{t0}, v{t1}, 3, v{t0}\nv_add_u32 v{t0}, {R3}, v{t0}")
        sFT, sET = 78, 79
        if B: a(f"s_and_b32 s{sFT}, s{sWV}, 3\ns_lshr_b32 s{sET}, s{sWV}, 2")
        else: a(f"s_and_b32 s{sFT}, s{sWV}, 1\ns_bfe_u32 s{sET}, s{sWV}, 0x10001")
        a(f"s_lshl_b32 s{sT0}, s{sFT}, 5\ns_lshl_b32 s{sT1}, s{sET}, 5\ns_add_u32 s{sT1}, s{sT1}, 128")
        a(f"v_xor_b32 v{ra}, s{sT0}, v{t0}\nv_xor_b32 v{rb_}, s{sT1}, v{t0}")
        vWOA = vXA
        a(f"v_lshrrev_b32 v{t0}, 4, v{vL}\nv_lshlrev_b32 v{t1}, 2, v{t0}\nv_sub_u32 v{t1}, v{vL}, v{t1}\nv_and_b32 v{t1}, 15, v{t1}\nv_min_u32 v{t1}, 13, v{t1}")
        a(f"v_mul_u32_u24 v{t0}, 896, v{t0}\nv_lshl_add_u32 v{vWOA}, v{t1}, 4, v{t0}")
        a(f"s_and_b32 s{sT0}, s{sH}, 3\ns_mul_i32 s{sT0}, s{sT0}, 224\nv_add_u32 v{vWOA}, s{sT0}, v{vWOA}")
        a("s_waitcnt vmcnt(0) lgkmcnt(0)")
        a("s_barrier")
        self.stamp()
        self.issue_wo(0, vWOA)
        KV = vU + 8
        if not B: a(f"s_cmp_ge_u32 s{sWV}, 4\ns_cbranch_scc1 L_nokv{br}")
        fr = [vK, vK+8, vV, vV+8]
        def rd(st):
            b = fr[st % 4]
            for sub in range(2):
                a(f"ds_read_b64_tr_b16 {vr(b+2*sub,2)}, v{ra} offset:{(32*st+16*sub)*256}")
            for sub in range(2):
                a(f"ds_read_b64_tr_b16 {vr(b+4+2*sub,2)}, v{rb_} offset:{(32*st+16*sub)*256}")
        for st in range(3): rd(st)
        for st in range(8):
            if st + 3 < 8: rd(st+3)
            left = min(7 - st, 3)
            a(f"s_waitcnt lgkmcnt({4*left})")
            b = fr[st % 4]
            a(f"v_mfma_f32_16x16x32_bf16 {vr(KV,4)}, {vr(b,4)}, {vr(b+4,4)}, {'0' if st == 0 else vr(KV,4)}")
        a(f"v_cvt_pk_bf16_f32 v{t0}, v{KV}, v{KV+1}\nv_cvt_pk_bf16_f32 v{t1}, v{KV+2}, v{KV+3}")
        a(f"s_mov_b32 s{sT1}, 0xffff0000")
        a(f"v_mov_b32 v{t2}, s{sTAG}")
        a(f"v_lshl_or_b32 v{KV}, v{t0}, 16, v{t2}\nv_and_or_b32 v{KV+1}, v{t0}, s{sT1}, v{t2}")
        a(f"v_lshl_or_b32 v{KV+2}, v{t1}, 16, v{t2}\nv_and_or_b32 v{KV+3}, v{t1}, s{sT1}, v{t2}")
        a(f"s_lshl_b32 s{sT0}, s{sRB}, 13\ns_add_u32 s{sT0}, s{sT0}, s{sPB}")
        a(f"buffer_store_dwordx4 {vr(KV,4)}, v{vL16}, s[{sWS}:{sWS+3}], s{sT0} offen sc1")
        if not B: a(f"L_nokv{br}:")
        a("s_barrier")
        self.stamp()
        self.issue_wo(1, vWOA)
        Fq = [vWF, vWF+4, vWF+8, vWF+12]
        a(f"s_mov_b32 s{sCR}, s{sROT}")
        for j in range(7):
            self.next_read_chunk()
            for t in range(4): self.wfrag(Fq[t], 2, t)
            for t in range(4):
                a(f"s_waitcnt lgkmcnt({6-2*t})")
                a(f"v_mfma_f32_32x32x16_bf16 {vr(vQ,16)}, {vr(Fq[t],4)}, {vr(vXF+16*j+4*t,4)}, {vr(vQ,16)}")
        self.stamp()
        PQp, PQm, vS = vWF, vWF+8, vXA+1
        if B: self.feat_B(vQ, PQp, PQm, vPH, True, vS)
        else: self.feat_A(vQ, PQp)
        self.stamp()
        a("s_waitcnt vmcnt(0)\ns_barrier")
        wa = [vT+4, vT+5]
        a(f"v_lshrrev_b32 v{t0}, 5, v{vL}\nv_bfe_u32 v{t1}, v{vL}, 2, 2")
        a(f"v_mul_u32_u24 v{t2}, 7, v{t0}\nv_add_u32 v{t2}, v{t2}, v{t1}")
        a(f"s_and_b32 s{sT0}, s{sWV}, 3\ns_mul_i32 s{sT0}, s{sT0}, 56")
        for t in range(2):
            a(f"v_add_u32 v{t3}, {14*t}, v{t2}")
            a(f"v_and_b32 v{t0}, 3, v{t3}\nv_lshlrev_b32 v{t0}, 6, v{t0}\nv_add3_u32 v{t0}, v{t0}, v{vCC}, s{sT0}\nv_and_b32 v{t0}, 255, v{t0}")
            a(f"v_lshl_add_u32 v{wa[t]}, v{t3}, 8, v{t0}")
        a(f"v_add_u32 v{vT+6}, {R3}, v{wa[0]}\nv_add_u32 v{vT+7}, {R3}, v{wa[1]}")
        a(f"s_mov_b32 s{sT1}, 0xffff")
        cnt = 0
        for hh in range(16):
            for t in range(2):
                ad = wa[t] if hh < 8 else vT+6+t
                d = vXF + (hh*2+t)*4
                for sub in range(2):
                    a(f"ds_read_b64_tr_b16 {vr(d+2*sub,2)}, v{ad} offset:{(28*(hh%8)+4*sub)*256}")
            if hh >= 2:
                a("s_waitcnt lgkmcnt(8)")
                for t in range(2): a(f"v_and_b32 v{vXF+((hh-2)*2+t)*4+3}, s{sT1}, v{vXF+((hh-2)*2+t)*4+3}")
        a("s_waitcnt lgkmcnt(0)")
        for hh in (14, 15):
            for t in range(2): a(f"v_and_b32 v{vXF+(hh*2+t)*4+3}, s{sT1}, v{vXF+(hh*2+t)*4+3}")
        self.stamp()
        if not B: a(f"s_cmp_ge_u32 s{sWV}, 4\ns_cbranch_scc1 L_nored{br}")
        a(f"s_mov_b32 s{sRETRY}, 0")
        a(f"L_h1_{br}:")
        G0 = vK
        for p in range(8):
            a(f"s_add_u32 s{sT0}, s{sPB}, {p*8192}")
            a(f"buffer_load_dwordx4 {vr(G0+4*p,4)}, v{vL16}, s[{sWS}:{sWS+3}], s{sT0} offen sc1")
        a(f"s_add_u32 s{sRETRY}, s{sRETRY}, 1")
        mm = vT+8
        for p in range(8):
            a(f"s_waitcnt vmcnt({7-p})")
            for i in range(4): a(f"v_xor_b32 v{G0+4*p+i}, s{sTAG}, v{G0+4*p+i}")
            if p == 0:
                a(f"v_or3_b32 v{mm}, v{G0}, v{G0+1}, v{G0+2}\nv_or_b32 v{mm}, v{mm}, v{G0+3}")
            else:
                a(f"v_or3_b32 v{mm}, v{mm}, v{G0+4*p}, v{G0+4*p+1}\nv_or3_b32 v{mm}, v{mm}, v{G0+4*p+2}, v{G0+4*p+3}")
                for i in range(4): a(f"v_add_f32 v{G0+i}, v{G0+i}, v{G0+4*p+i}")
        a(f"v_and_b32 v{mm}, 0xffff, v{mm}\nv_cmp_ne_u32 vcc, 0, v{mm}")
        a(f"s_cmp_ge_u32 s{sRETRY}, 100000\ns_cbranch_scc1 L_h1x_{br}\ns_cbranch_vccnz L_h1_{br}")
        a(f"L_h1x_{br}:")
        a(f"v_lshrrev_b32 v{t0}, 4, v{vL}")
        a(f"s_and_b32 s{sT0}, s{sFT}, 1\ns_lshl_b32 s{sT0}, s{sT0}, 2\nv_add_u32 v{t1}, s{sT0}, v{t0}\nv_cmp_eq_u32 vcc, 7, v{t1}")
        a(f"v_cvt_pk_bf16_f32 v{G0}, v{G0}, v{G0+1}\nv_cvt_pk_bf16_f32 v{G0+1}, v{G0+2}, v{G0+3}")
        a(f"v_cndmask_b32 v{G0}, v{G0}, 0, vcc\nv_cndmask_b32 v{G0+1}, v{G0+1}, 0, vcc".replace("v_cndmask_b32", "v_cndmask_b32_e64"))
        a(f"v_and_b32 v{t1}, 15, v{vL}\ns_lshl_b32 s{sT0}, s{sET}, 4\nv_add_u32 v{t1}, s{sT0}, v{t1}\nv_mul_u32_u24 v{t1}, 144, v{t1}")
        a(f"v_and_b32 v{t2}, 1, v{t0}\nv_lshrrev_b32 v{t0}, 1, v{t0}\nv_lshlrev_b32 v{t0}, 3, v{t0}\nv_lshl_add_u32 v{t0}, v{t2}, 4, v{t0}")
        a(f"s_lshl_b32 s{sT0}, s{sFT}, 5\ns_add_u32 s{sT0}, s{sT0}, {KVT}\nv_add3_u32 v{t1}, v{t1}, v{t0}, s{sT0}")
        a(f"ds_write_b64 v{t1}, {vr(G0,2)}")
        if not B: a(f"L_nored{br}:")
        a(f"v_and_b32 v{t0}, 3, v{vL}\nv_bfe_u32 v{t1}, v{vL}, 3, 1\nv_lshl_add_u32 v{t0}, v{t1}, 2, v{t0}")
        a(f"v_bfe_u32 v{t1}, v{vL}, 4, 1\nv_bfe_u32 v{t2}, v{vL}, 2, 1\nv_lshl_add_u32 v{t1}, v{t1}, 1, v{t2}")
        a(f"v_mad_u32_u24 v{t1}, v{t1}, 7, v{t0}\nv_cmp_eq_u32 vcc, 7, v{t0}\nv_cndmask_b32_e64 v{t1}, v{t1}, 28, vcc")
        a(f"v_mul_u32_u24 v{t1}, 144, v{t1}\nv_lshrrev_b32 v{t2}, 5, v{vL}\nv_lshl_add_u32 v{t1}, v{t2}, 4, v{t1}\nv_add_u32 v{t1}, {KVT}, v{t1}")
        a("s_waitcnt lgkmcnt(0)\ns_barrier")
        self.stamp()
        nu = 4 if B else 2
        KA = vK
        for u in range(nu): a(f"ds_read_b128 {vr(KA+4*u,4)}, v{t1} offset:{32*u}")
        N = vQ
        for u in range(nu):
            a(f"s_waitcnt lgkmcnt({nu-1-u})")
            a(f"v_mfma_f32_32x32x16_bf16 {vr(N,16)}, {vr(KA+4*u,4)}, {vr(vWF+4*u,4)}, {'0' if u == 0 else vr(N,16)}")
        if B: a(f"v_add_f32 v{t0}, v{N+7}, v{vS}")
        else: a(f"v_add_f32 v{t0}, s{sLOG}, v{N+7}")
        a(f"v_rcp_f32 v{t0}, v{t0}")
        for r in range(16):
            if r % 8 != 7: a(f"v_mul_f32 v{N+r}, v{t0}, v{N+r}")
        OP = vV
        for p in range(8): a(f"v_cvt_pk_bf16_f32 v{OP+p}, v{N+2*p}, v{N+2*p+1}")
        a(f"v_mov_b32 v{t2}, s{sTAGHI}")
        a(f"s_mov_b32 s{sT1}, 0xffff")
        a(f"v_and_or_b32 v{OP+3}, v{OP+3}, s{sT1}, v{t2}\nv_and_or_b32 v{OP+7}, v{OP+7}, s{sT1}, v{t2}")
        a(f"s_lshl_b32 s{sT0}, s{sWV}, 4\ns_add_u32 s{sT0}, s{sT0}, s{sH}\ns_lshl_b32 s{sT0}, s{sT0}, 11\ns_add_u32 s{sT0}, s{sT0}, s{sOB}")
        a(f"buffer_store_dwordx4 {vr(OP,4)}, v{vL16}, s[{sWS}:{sWS+3}], s{sT0} offen sc1")
        a(f"buffer_store_dwordx4 {vr(OP+4,4)}, v{vL16}, s[{sWS}:{sWS+3}], s{sT0} offen offset:1024 sc1")
        a("s_waitcnt vmcnt(0)")
        self.stamp()
        sOS, sOM = sXB, sWB
        a(f"s_lshr_b32 s{sT0}, s{sWV}, 2\ns_lshl_b32 s{sT0}, s{sT0}, 4\ns_and_b32 s{sT1}, s{sWV}, 3\ns_add_u32 s{sT0}, s{sT0}, s{sT1}\ns_lshl_b32 s{sT0}, s{sT0}, 11")
        a(f"s_add_u32 s{sOM}, s{sT0}, {R3}")
        a(f"s_lshr_b32 s{sT1}, s{sH}, 2\ns_lshl_b32 s{sT1}, s{sT1}, 16\ns_add_u32 s{sOS}, s{sT0}, s{sT1}\ns_add_u32 s{sOS}, s{sOS}, s{sOB}")
        def odma(q):
            a(f"s_add_u32 m0, s{sOM}, {q*8192}\ns_add_u32 s{sT0}, s{sOS}, {q*8192}")
            a(f"buffer_load_dwordx4 v{vL16}, s[{sWS}:{sWS+3}], s{sT0} offen sc1 lds")
            a(f"buffer_load_dwordx4 v{vL16}, s[{sWS}:{sWS+3}], s{sT0} offen offset:1024 sc1 lds")
        for q in range(4): odma(q)
        vCK, vOR = vT+4, vT+5
        a(f"v_add_u32 v{vCK}, s{sOM}, v{vL16}")
        a(f"s_lshr_b32 s{sT0}, s{sWV}, 2\ns_lshl_b32 s{sT0}, s{sT0}, 15\ns_add_u32 s{sT0}, s{sT0}, {R3}\nv_add_u32 v{vOR}, s{sT0}, v{vL16}")
        ACC = vK
        OF = [vU, vU+4, vU+8, vU+12]
        for q in range(4):
            a(f"s_mov_b32 s{sRETRY}, 0")
            a(f"s_waitcnt vmcnt({6-2*q})")
            a(f"L_h2_{br}_{q}:")
            a(f"ds_read_b32 v{t0}, v{vCK} offset:{q*8192+12}\nds_read_b32 v{t1}, v{vCK} offset:{q*8192+1024+12}")
            a("s_waitcnt lgkmcnt(0)")
            a(f"v_xor_b32 v{t0}, s{sTAGHI}, v{t0}\nv_xor_b32 v{t1}, s{sTAGHI}, v{t1}\nv_or_b32 v{t0}, v{t0}, v{t1}")
            a(f"v_cmp_lt_u32 vcc, 0xffff, v{t0}")
            a(f"s_cbranch_vccz L_h2x_{br}_{q}")
            a(f"s_add_u32 s{sRETRY}, s{sRETRY}, 1\ns_cmp_ge_u32 s{sRETRY}, 100000\ns_cbranch_scc1 L_h2x_{br}_{q}")
            odma(q)
            a(f"s_waitcnt vmcnt(0)\ns_branch L_h2_{br}_{q}")
            a(f"L_h2x_{br}_{q}:")
            a("s_barrier")
            for i in range(3): a(f"ds_read_b128 {vr(OF[i],4)}, v{vOR} offset:{(q*8+i)*1024}")
            for i in range(8):
                if i + 3 < 8: a(f"ds_read_b128 {vr(OF[(i+3)%4],4)}, v{vOR} offset:{(q*8+i+3)*1024}")
                a(f"s_waitcnt lgkmcnt({min(7-i,3)})")
                ks = q*8 + i
                a(f"v_mfma_f32_32x32x16_bf16 {vr(ACC,16)}, {vr(vXF+4*ks,4)}, {vr(OF[i%4],4)}, {'0' if ks == 0 else vr(ACC,16)}")
        self.stamp()
        a(f"s_or_b32 s{sT0}, s{sH}, s{sRB}\ns_or_b32 s{sT0}, s{sT0}, s{sWV}\ns_cmp_eq_u32 s{sT0}, 0\ns_cbranch_scc0 L_noe{br}")
        a(f"s_or_b32 s{sT0}, s{sTAG}, s{sTAGHI}\nv_mov_b32 v{t0}, s{sT0}\nv_mov_b32 v{t1}, {E_OFF + br*256}")
        a(f"buffer_store_dword v{t0}, v{t1}, s[{sWS}:{sWS+3}], 0 offen sc1")
        a(f"L_noe{br}:")
        a(f"v_and_b32 v{t0}, 31, v{vL}\nv_lshrrev_b32 v{t1}, 5, v{vL}\nv_mul_u32_u24 v{t0}, {OUTP}, v{t0}\nv_lshl_add_u32 v{t0}, v{t1}, 3, v{t0}")
        a(f"s_lshr_b32 s{sT0}, s{sWV}, 2\ns_mul_i32 s{sT0}, s{sT0}, {32*OUTP}\ns_and_b32 s{sT1}, s{sWV}, 3\ns_mul_i32 s{sT1}, s{sT1}, 56\ns_add_u32 s{sT0}, s{sT0}, s{sT1}")
        a(f"v_add_u32 v{t0}, s{sT0}, v{t0}")
        for p in range(8): a(f"v_cvt_pk_bf16_f32 v{vV+p}, v{ACC+2*p}, v{ACC+2*p+1}")
        for g in range(3): a(f"ds_write_b64 v{t0}, {vr(vV+2*g,2)} offset:{R1+16*g}")
        a(f"s_mov_b32 exec_hi, 0")
        a(f"ds_write_b64 v{t0}, {vr(vV+6,2)} offset:{R1+48}")
        a(f"s_mov_b32 exec_hi, -1")
        a(f"s_mov_b32 s{sT1}, 4682")
        for k in range(2):
            a(f"v_add_u32 v{t1}, {512*k}, v0")
            a(f"v_mul_u32_u24 v{t2}, s{sT1}, v{t1}\nv_lshrrev_b32 v{t2}, 16, v{t2}")
            a(f"v_mul_u32_u24 v{t3}, 14, v{t2}\nv_sub_u32 v{t3}, v{t1}, v{t3}\nv_lshlrev_b32 v{t3}, 4, v{t3}")
            a(f"v_mad_u32_u24 v{vT+8+k}, v{t2}, s{sC+0 if False else sT2}, v{t3}" if False else f"v_mul_u32_u24 v{vT+8+k}, {OUTP}, v{t2}")
            a(f"v_add_u32 v{vT+8+k}, v{vT+8+k}, v{t3}")
            a(f"v_mul_u32_u24 v{vT+10+k}, 1792, v{t2}\nv_add_u32 v{vT+10+k}, v{vT+10+k}, v{t3}")
        a(f"s_lshl_b32 s{sT0}, s{sRB}, 2\ns_lshr_b32 s{sT1}, s{sH}, 2\ns_add_u32 s{sT0}, s{sT0}, s{sT1}\ns_mul_i32 s{sT0}, s{sT0}, {64*1792}")
        a(f"s_and_b32 s{sT1}, s{sH}, 3\ns_mul_i32 s{sT1}, s{sT1}, 224\ns_add_u32 s{sT0}, s{sT0}, s{sT1}\ns_add_u32 s{sT0}, s{sT0}, {br*896}")
        a("s_waitcnt lgkmcnt(0)\ns_barrier")
        a(f"ds_read_b128 {vr(vQ,4)}, v{vT+8} offset:{R1}")
        a(f"s_cmp_ge_u32 s{sWV}, 6\ns_cbranch_scc1 L_st1_{br}")
        a(f"ds_read_b128 {vr(vQ+4,4)}, v{vT+9} offset:{R1}")
        a("s_waitcnt lgkmcnt(0)")
        a(f"buffer_store_dwordx4 {vr(vQ+4,4)}, v{vT+11}, s[{sOUT}:{sOUT+3}], s{sT0} offen")
        a(f"L_st1_{br}:")
        a("s_waitcnt lgkmcnt(0)")
        a(f"buffer_store_dwordx4 {vr(vQ,4)}, v{vT+10}, s[{sOUT}:{sOUT+3}], s{sT0} offen")
        if self.stamps:
            a("s_waitcnt vmcnt(0)")
            self.stamp()
            a(f"s_cmp_eq_u32 s{sWV}, 0\ns_cbranch_scc0 L_end")
            if self.amp:
                i, j, k = self.amp
                a(f"s_sub_u32 s{sT0}, s{sST+j}, s{sST+i}\ns_mul_i32 s{sT0}, s{sT0}, {k}\ns_add_u32 s{sT0}, s{sT0}, s{sST+self.ns-1}")
                a(f"L_amp{br}:\ns_memrealtime s[{sSV}:{sSV+1}]\ns_waitcnt lgkmcnt(0)\ns_sub_u32 s{sT1}, s{sSV}, s{sT0}\ns_cmp_lt_i32 s{sT1}, 0\ns_cbranch_scc1 L_amp{br}\ns_endpgm")
            a(f"s_mov_b64 exec, 1\ns_lshl_b32 s{sT0}, s2, 6\ns_add_u32 s{sT0}, s{sT0}, {S_OFF}\nv_mov_b32 v{t1}, 0")
            for i in range(self.ns):
                a(f"v_mov_b32 v{t0}, s{sST+i}\nbuffer_store_dword v{t0}, v{t1}, s[{sWS}:{sWS+3}], s{sT0} offen offset:{4*i}")
            if self.stamps == 2:
                a(f"s_mov_b32 s{sX}, s52\ns_mov_b32 s{sX+1}, s53\ns_mov_b32 s{sX+2}, 256")
                a(f"s_not_b32 s{sT0}, s{sST}\nv_mov_b32 v{t0}, s{sT0}\nbuffer_atomic_umax v{t0}, v{t1}, s[{sX}:{sX+3}], 0 offen sc1")
                a(f"v_mov_b32 v{t2}, s{sST+self.ns-1}\nbuffer_atomic_umax v{t2}, v{t1}, s[{sX}:{sX+3}], 0 offen offset:4 sc1")
                a(f"s_cmp_eq_u32 s2, 0\ns_cbranch_scc0 L_end")
                for i in range(self.ns):
                    a(f"s_sub_u32 s{sT0}, s{sST+i}, s{sST}\nv_mov_b32 v{t3}, s{sT0}\nbuffer_store_dword v{t3}, v{t1}, s[{sX}:{sX+3}], 0 offen offset:{8+4*i}")
        a("s_endpgm")

    def build(self):
        a = self.a
        self.prologue()
        self.branch(1)
        a("L_A:")
        self.branch(0)
        a("L_end:\ns_endpgm")
        body = a.finish()
        src = open(f"cdna_kernels/{NAME}.s.ref").read().split("\n")
        hdr = [l for l in src if l.startswith(";") and "@launch" not in l and l.startswith("; ") and ("offset" in l or "Kernarg" in l)]
        out = "\n".join(hdr) + "\n"
        out += f"; @launch grid=(256,1,1) block=(512,1,1) lds={LDS_BYTES}\n"
        out += f'.amdgcn_target "amdgcn-amd-amdhsa--gfx950"\n.text\n.globl {KN}\n.p2align 8\n.type {KN},@function\n{KN}:\n'
        out += body
        out += f'''.section .rodata,"a"
.p2align 6
.amdhsa_kernel {KN}
  .amdhsa_next_free_vgpr 256
  .amdhsa_next_free_sgpr 102
  .amdhsa_accum_offset 256
  .amdhsa_group_segment_fixed_size 0
  .amdhsa_kernarg_size 80
  .amdhsa_user_sgpr_count 2
  .amdhsa_user_sgpr_kernarg_segment_ptr 1
  .amdhsa_system_sgpr_workgroup_id_x 1
.end_amdhsa_kernel
'''
        return out

if __name__ == "__main__":
    open("k1.s", "w").write(G(False).build())
    open("k1_st.s", "w").write(G(True).build())
    open("k1_dbg.s", "w").write(G(2).build())
    open("k1_amp0.s", "w").write(G(True, amp=(0, 0, 4)).build())
    open("k1_amp_all.s", "w").write(G(True, amp=(0, 11, 4)).build())
    open("k1_amp_01.s", "w").write(G(True, amp=(0, 1, 10)).build())
    open("k1_amp_02.s", "w").write(G(True, amp=(0, 2, 4)).build())
    open("k1_amp_9_10.s", "w").write(G(True, amp=(9, 10, 4)).build())
    open("k1_amp_2_9.s", "w").write(G(True, amp=(2, 9, 4)).build())
```

```python
import re

TRANS = ("v_exp_f32", "v_log_f32", "v_rcp_f32", "v_rsq_f32", "v_sqrt_f32", "v_sin_f32", "v_cos_f32")

def regs_of(tok):
    tok = tok.strip()
    tok = tok.lstrip('-')
    m = re.fullmatch(r"abs\((.*)\)|\|(.*)\|", tok)
    if m: tok = m.group(1) or m.group(2)
    m = re.fullmatch(r"([vsa])(\d+)", tok)
    if m: return {(m.group(1), int(m.group(2)))}
    m = re.fullmatch(r"([vsa])\[(\d+):(\d+)\]", tok)
    if m: return {(m.group(1), i) for i in range(int(m.group(2)), int(m.group(3)) + 1)}
    if tok == "vcc": return {('s', 'vcc')}
    if tok in ("vcc_lo", "vcc_hi"): return {('s', 'vcc')}
    if tok == "m0": return {('s', 'm0')}
    if tok == "exec": return {('s', 'exec')}
    return set()

class Ins:
    def __init__(self, text):
        self.text = text
        t = text.split(';')[0].strip()
        self.is_label = t.endswith(':')
        self.op = t.split()[0] if t and not self.is_label else ''
        rest = t[len(self.op):].strip() if not self.is_label else ''
        ops = [o.strip() for o in rest.split(',')] if rest else []
        self.mods = ''
        if ops:
            parts = ops[-1].split()
            ops[-1] = parts[0] if parts else ''
            self.mods = ' '.join(parts[1:])
        self.ops = ops
        op = self.op
        self.kind = 'other'
        self.w = set(); self.r = set()
        self.A = self.B = self.C = set()
        R = [regs_of(o) for o in ops]
        def U(l):
            s = set()
            for x in l: s |= x
            return s
        if op.startswith('v_mfma'):
            self.kind = 'mfma'
            self.w = R[0]; self.A, self.B, self.C = R[1], R[2], R[3]
            self.r = R[1] | R[2] | R[3]
            self.passes = 8 if '32x32' in op else 4
        elif op.startswith('v_'):
            self.kind = 'valu'
            if op.startswith('v_permlane') and 'swap' in op:
                self.w = R[0] | R[1]; self.r = R[0] | R[1]
            elif op.startswith('v_cmp'):
                self.w = R[0]; self.r = U(R[1:])
            elif op in ('v_add_co_u32', 'v_sub_co_u32'):
                self.w = R[0] | R[1]; self.r = U(R[2:])
            elif op.startswith('v_fmac') or op.startswith('v_pk_fmac') or op.startswith('v_writelane'):
                self.w = R[0]; self.r = U(R)
            else:
                self.w = R[0]; self.r = U(R[1:])
            if op.startswith('v_cndmask') and len(ops) == 3: self.r |= {('s', 'vcc')}
        elif op.startswith('ds_'):
            self.kind = 'ds'
            if op.startswith('ds_read') or op.startswith('ds_bperm') or op.startswith('ds_swizzle'):
                self.w = R[0]; self.r = U(R[1:])
                if 'd16' in op: self.r |= R[0]
            else:
                self.r = U(R)
        elif op.startswith('buffer_') or op.startswith('global_'):
            self.kind = 'vmem'
            islds = 'lds' in self.mods.split()
            self.islds = islds
            if 'load' in op and not islds:
                self.w = R[0]; self.r = U(R[1:])
            elif 'atomic' in op and 'sc0' in self.mods.split():
                self.w = R[0]; self.r = U(R)
            else:
                self.r = U(R)
            if islds: self.r |= {('s', 'm0')}
            self.widestore = ('store' in op) and (op.endswith('x4') or op.endswith('x3'))
            self.data = R[0] if 'store' in op else set()
        elif op.startswith('s_'):
            self.kind = 'salu'
            if op.startswith('s_cmp') or op.startswith('s_cbranch') or op in ('s_branch', 's_barrier', 's_waitcnt', 's_nop', 's_endpgm', 's_setprio', 's_sleep'):
                self.r = U(R)
            else:
                self.w = R[0] if R else set(); self.r = U(R[1:])
        self.states = 1
        if op == 's_nop': self.states = int(ops[0], 0) + 1
        if self.is_label or not op: self.states = 0

def need(p, c):
    n = 0
    pv = {x for x in p.w if x[0] in 'va'}
    ps = {x for x in p.w if x[0] == 's'}
    if p.kind == 'valu':
        if c.kind == 'mfma' and pv & c.r: n = max(n, 2)
        if c.kind == 'valu':
            if c.op.startswith('v_permlane') and pv & c.r: n = max(n, 2)
            if ('dpp' in c.mods or 'row_' in c.mods or 'quad_perm' in c.mods) and pv & c.r: n = max(n, 2)
            if c.op.startswith(('v_readlane', 'v_readfirstlane')) and pv & c.r: n = max(n, 1)
            if p.op.replace('_e64', '').replace('_e32', '') in TRANS and pv & (c.r | c.w): n = max(n, 1)
            if ps & c.r: n = max(n, 4 if c.op.startswith(('v_readlane', 'v_writelane')) else 2)
            if ('sdwa' in p.op or 'dst_sel' in p.mods or 'op_sel' in p.mods) and not p.op.startswith('v_pk') and pv & (c.r | c.w): n = max(n, 1)
        if p.op.startswith('v_dot') and pv & (c.r | c.w) and c.kind in ('valu', 'mfma', 'ds', 'vmem'):
            same_acc = (c.op == p.op and len(c.ops) == 4 and regs_of(c.ops[3]) == pv and not (pv & (regs_of(c.ops[1]) | regs_of(c.ops[2]))))
            if not same_acc: n = max(n, 3)
        if c.kind == 'vmem' and ps & c.r: n = max(n, 5)
        if c.kind == 'salu' and ps & c.r: n = max(n, 1)
    if p.kind == 'mfma':
        big = p.passes + 4
        ovl = p.passes + 2
        if c.kind == 'mfma':
            if p.w & (c.A | c.B): n = max(n, big)
            if p.w & c.C and not (c.C == p.w and c.passes == p.passes): n = max(n, ovl)
            if p.w & c.w and not (c.C == p.w and c.w == p.w and c.passes == p.passes): n = max(n, ovl)
        elif c.kind in ('valu', 'ds', 'vmem'):
            if p.w & (c.r | c.w): n = max(n, big)
            if c.kind == 'valu' and p.C & c.w: n = max(n, p.passes - 1)
    if p.kind == 'salu':
        if ('s', 'm0') in p.w and c.kind == 'vmem' and getattr(c, 'islds', False): n = max(n, 1)
    if p.kind == 'vmem' and p.widestore:
        if c.kind == 'valu' and p.data & c.w: n = max(n, 2)
        elif c.kind in ('ds', 'vmem', 'mfma') and p.data & c.w: n = max(n, 1)
    return n

class Asm:
    def __init__(self):
        self.lines = []
    def __call__(self, text):
        for l in text.split('\n'):
            l = l.strip()
            if l: self.lines.append(l)
    def finish(self):
        out = []; hist = []
        srcs = {}
        nnop = 0
        def lookback(c):
            req = 0
            stack = [(len(hist) - 1, 0)]; seen = set()
            while stack:
                i, dist = stack.pop()
                while i >= 0 and dist < 20:
                    if (i, dist) in seen: break
                    seen.add((i, dist))
                    p = hist[i]
                    if isinstance(p, tuple):
                        for b in srcs.get(p[1], []): stack.append((b, dist))
                        j = i - 1
                        while j >= 0 and isinstance(hist[j], tuple):
                            for b in srcs.get(hist[j][1], []): stack.append((b, dist))
                            j -= 1
                        if j >= 0 and hist[j].op in ('s_branch', 's_endpgm'): break
                        i = j; continue
                    k = need(p, c) - dist
                    if k > req: req = k
                    dist += p.states; i -= 1
            return req
        for l in self.lines:
            if l.startswith(';') or l.startswith('.'):
                out.append(l); continue
            c = Ins(l)
            if c.is_label:
                out.append(l); hist.append(('label', l.split(':')[0].strip())); continue
            req = lookback(c)
            while req > 0:
                k = min(req, 16)
                nop = Ins(f"s_nop {k-1}")
                out.append("    " + nop.text); hist.append(nop); req -= k; nnop += 1
            out.append("    " + l); hist.append(c)
            if c.op.startswith('s_cbranch') or c.op == 's_branch':
                srcs.setdefault(c.ops[0], []).append(len(hist) - 1)
        self.nnop = nnop
        return "\n".join(out) + "\n"
```

```python
import sys
from asmdsl import Asm

NAME = "concat_heads__linear_attn_block__linear_kernel_hedgehog__prompt"
KN = NAME + "_kernel"

PART = 28672
R1 = 0
R2 = 2 * PART
R3 = 3 * PART
R4 = R3 + 65536
WPHI = R4
KVT = R4 + 2048
LDS_BYTES = 163840
OUTP = 272
OIM = 0
OSTG = 65536

E_OFF = 0x0
X_OFF = 0x10000
XS = 32
P_OFF = 0x100000
O_OFF = 0x400000
K_OFF = 0x800000
S_OFF = 0x1000000

sX, sW, sWO, sWS, sOUT, sPH = 8, 12, 16, 20, 24, 28
sWV, sH, sRB, sROT = 32, 33, 34, 35
sTAG, sTAGHI = 56, 57
sXB, sWB, sWM, sXM, sCI, sCR = 58, 59, 60, 61, 62, 63
sT0, sT1, sT2, sT3 = 64, 65, 66, 67
sPB, sOB = 68, 69
sUP = 70
sRETRY, sC, sEPS, sIDX = 72, 73, 74, 75
sSV = 76
sFT, sET = 78, 79
sST = 80
sM16, sOUTB, sXCC, sFAST = 96, 97, 98, 99
sOW = 100
sOM7, sOS7 = 5, 101
sONE, sONH = 6, 93
sCODE = 4
sBI = 3
sRO = 4

vL = 1
vXA = 2
vWA = 6
vXR = 7
vWR0 = 11
vWR = 12
vL16 = 13
vE = 14
vCC = 15
vTW = 16
vTA = 17; vTB = 18
vWOA = 19
vWO = 20
vKW = 24
vKR = 25
vSTG = 26
vOL = 27
vOG = 28
vFL = 29
vFA = 30
vS = 31
vT = 32
vWF = 48
vK = 64; vV = 80; vQ = 96
vU = 112
vXF = 128
vPH = 240

LOG2E = 0x3fb8aa3b
EPS = 0x358637bd

def vr(b, n): return f"v[{b}:{b+n-1}]"
def L(s): return [x.strip() for x in s.split("\n") if x.strip()]

def merge(main, side, start=0, end=None):
    if end is None: end = len(main)
    out = []; n = len(side); span = max(end - start, 1); k = 0
    for i, ins in enumerate(main):
        while k < n and i >= start and (i - start) * n >= k * span and i < end:
            out += side[k]; k += 1
        out.append(ins)
    while k < n: out += side[k]; k += 1
    return out

class Q:
    def __init__(self, cnt): self.q = []; self.cnt = cnt
    def issue(self, name): self.q.append(name)
    def wait(self, name):
        i = max(k for k, x in enumerate(self.q) if x == name)
        n = len(self.q) - 1 - i
        self.q = self.q[i+1:]
        return f"s_waitcnt {self.cnt}({n})"

class G:
    def __init__(self, stamps=False, amp=None, **o):
        self.a = Asm(); self.stamps = stamps; self.ns = 0; self.amp = amp
        self.o = dict(fast=True, codepf=True, xf="", outf="", S2=False, otouch=True, late_issue=True, h1at=17, h1st=3, wotouch=True, role=True, cyc=False, late_pro=True, xst=None)
        self.o.update(o)
    def stamp(self):
        if not self.stamps: return
        self.a(f"{'s_memtime' if self.o['cyc'] else 's_memrealtime'} s[{sSV}:{sSV+1}]\ns_waitcnt lgkmcnt(0)\ns_mov_b32 s{sST+self.ns}, s{sSV}")
        self.ns += 1
    def xstamp(self, name):
        if self.stamps and (self.o['xst'] or 'first') == name:
            self.a(f"{'s_memtime' if self.o['cyc'] else 's_memrealtime'} s[{sSV}:{sSV+1}]\ns_waitcnt lgkmcnt(0)\ns_mov_b32 s{sST+12}, s{sSV}")
    def emit(self, lst):
        for x in lst: self.a(x)

    def prologue(self):
        a = self.a
        if self.stamps: a(f"{'s_memtime' if self.o['cyc'] else 's_memrealtime'} s[{sST}:{sST+1}]")
        a("s_load_dwordx16 s[36:51], s[0:1], 0")
        a("s_load_dwordx4 s[52:55], s[0:1], 64")
        a("s_cmp_ge_u32 s2, 256\ns_cbranch_scc1 L_end")
        a(f"v_lshrrev_b32 v{vT}, 6, v0")
        a(f"v_and_b32 v{vL}, 63, v0")
        a(f"s_lshr_b32 s{sIDX}, s2, 3")
        a(f"v_readfirstlane_b32 s{sWV}, v{vT}")
        if self.o['codepf']:
            a(f"s_getpc_b64 s[{sCODE}:{sCODE+1}]")
            a("L_pc:")
            a(f"s_bitcmp1_b32 s2, 2\ns_cselect_b32 s{sT0}, L_A-L_pc, 0")
            a(f"s_lshl_b32 s{sT1}, s{sIDX}, 9\ns_add_u32 s{sT0}, s{sT0}, s{sT1}")
            a(f"s_mov_b32 s{sCODE+2}, L_end-L_pc\ns_mov_b32 s{sCODE+3}, 0x20000")
            a(f"v_lshlrev_b32 v{vT+1}, 7, v0")
            a(f"s_cmp_lg_u32 s{sWV}, 0\ns_cbranch_scc1 L_nopf")
            a(f"s_mov_b64 exec, 0xff")
            a(f"buffer_load_dword v{vT+11}, v{vT+1}, s[{sCODE}:{sCODE+3}], s{sT0} offen")
            a(f"s_mov_b64 exec, -1")
            a("L_nopf:")
        a(f"s_and_b32 s{sH}, s{sIDX}, 15")
        a(f"s_and_b32 s{sT1}, s2, 3\ns_lshl_b32 s{sT1}, s{sT1}, 1\ns_lshr_b32 s{sT2}, s{sIDX}, 4\ns_add_u32 s{sRB}, s{sT1}, s{sT2}")
        a(f"s_mul_i32 s{sT1}, s{sIDX}, 37\ns_lshr_b32 s{sT1}, s{sT1}, 8\ns_mul_i32 s{sT1}, s{sT1}, 7\ns_sub_u32 s{sROT}, s{sIDX}, s{sT1}")
        a(f"v_lshrrev_b32 v{vT}, 3, v{vL}")
        a(f"v_mul_u32_u24 v{vT}, 896, v{vT}")
        a(f"v_and_b32 v{vT+1}, 7, v{vL}\nv_lshrrev_b32 v{vT+2}, 4, v{vL}\nv_xor_b32 v{vT+1}, v{vT+1}, v{vT+2}")
        a(f"v_lshl_add_u32 v{vXA}, v{vT+1}, 4, v{vT}")
        a(f"v_xor_b32 v{vT+1}, 4, v{vT+1}")
        a(f"v_lshl_add_u32 v{vXA+1}, v{vT+1}, 4, v{vT}")
        a(f"v_add_u32 v{vXA+2}, {2*6144}, v{vXA}")
        a(f"v_add_u32 v{vXA+3}, {3*6144}, v{vXA+1}")
        a(f"v_add_u32 v{vXA+1}, 6144, v{vXA+1}")
        a(f"v_lshrrev_b32 v{vT}, 2, v{vL}\nv_mul_u32_u24 v{vT}, 2688, v{vT}\nv_and_b32 v{vT+1}, 3, v{vL}")
        a(f"v_lshl_add_u32 v{vWA}, v{vT+1}, 4, v{vT}")
        a(f"s_mul_i32 s{sT1}, s{sH}, 56\ns_and_b32 s{sT1}, s{sT1}, 0xfffffff0")
        a(f"v_add_u32 v{vWA}, s{sT1}, v{vWA}")
        a(f"s_lshl_b32 s{sT1}, s{sRB}, 3\ns_add_u32 s{sT1}, s{sT1}, s{sWV}\ns_mul_i32 s{sXB}, s{sT1}, {32*896}")
        a(f"s_lshr_b32 s{sT1}, s{sWV}, 2\ns_and_b32 s{sT2}, s{sWV}, 3")
        a(f"s_mul_i32 s{sWB}, s{sT1}, 896\ns_add_u32 s{sWB}, s{sWB}, 896\ns_mul_i32 s{sT3}, s{sT2}, {16*2688}\ns_add_u32 s{sWB}, s{sWB}, s{sT3}")
        a(f"s_mul_i32 s{sWM}, s{sT1}, {PART}\ns_lshl_b32 s{sT3}, s{sT2}, 10\ns_add_u32 s{sWM}, s{sWM}, s{sT3}")
        a(f"s_lshl_b32 s{sXM}, s{sWV}, 13\ns_add_u32 s{sXM}, s{sXM}, {R3}")
        a(f"s_mov_b32 s{sCI}, s{sROT}\ns_mov_b32 s{sCR}, s{sROT}")
        a(f"s_mov_b32 s{sX+2}, 1835008\ns_mov_b32 s{sX+3}, 0x20000")
        a(f"s_mov_b32 s{sW+2}, 1204224\ns_mov_b32 s{sW+3}, 0x20000")
        a("s_bitcmp1_b32 s2, 2")
        a("s_cbranch_scc1 L_A")

    def issue_chunk(self, slot, n):
        a = self.a; br = self.br; o = self.o
        a(f"s_lshl_b32 s{sT0}, s{sCI}, 7\ns_add_u32 s{sT0}, s{sT0}, s{sXB}")
        if o['S2']: a(f"s_cmp_ge_u32 s{sWV}, 4\ns_cbranch_scc1 L_nw{br}_{n}")
        a(f"s_mul_i32 s{sT1}, s{sCI}, {64*2688}\ns_lshl_b32 s{sT2}, s{sCI}, 12\ns_add_u32 m0, s{sT2}, s{sWM}\ns_add_u32 s{sT1}, s{sT1}, s{sWB}")
        a(f"buffer_load_dwordx4 v{vWA}, s[{sW}:{sW+3}], s{sT1} offen lds")
        if o['S2']: a(f"L_nw{br}_{n}:")
        a(f"s_add_u32 m0, s{sXM}, {slot*4096}")
        a(f"s_add_u32 s{sCI}, s{sCI}, 1")
        a(f"s_cmp_eq_u32 s{sCI}, 7")
        for i in range(4):
            a(f"buffer_load_dwordx4 v{vXA+i}, s[{sX}:{sX+3}], s{sT0} offen offset:{i*1024} {o['xf']} lds")
        a(f"s_cselect_b32 s{sCI}, 0, s{sCI}")

    def wpart(self, m, colbyte, ldsbase):
        o = []
        if m == 3: o += L(f"s_cmp_ge_u32 s{sWV}, 4\ns_cselect_b32 s{sT0}, 16, 24\ns_cselect_b64 exec, 1, -1\ns_add_u32 s{sT0}, s{sT0}, s{sWV}")
        else: o += L(f"s_add_u32 s{sT0}, s{sWV}, {8*m}")
        o += L(f"s_lshl_b32 s{sT1}, s{sROT}, 2\ns_add_u32 s{sT0}, s{sT0}, s{sT1}\ns_cmp_ge_u32 s{sT0}, 28\ns_cselect_b32 s{sT1}, 28, 0\ns_sub_u32 s{sT0}, s{sT0}, s{sT1}")
        o += L(f"s_mul_i32 s{sT1}, s{sT0}, {16*2688}\ns_lshl_b32 s{sT0}, s{sT0}, 10\ns_add_u32 m0, s{sT0}, {ldsbase}\ns_add_u32 s{sT1}, s{sT1}, {colbyte}")
        o += L(f"buffer_load_dwordx4 v{vWA}, s[{sW}:{sW+3}], s{sT1} offen lds")
        if m == 3: o += L("s_mov_b64 exec, -1")
        return o

    def issue_wo(self, half):
        reg = R1 if half == 0 else R3
        return [L(f"s_add_u32 m0, s{sOM7}, {reg + mm*1024}\ns_add_u32 s{sT2}, s{sOS7}, {half*224*896 + mm*3584}\n"
                  f"buffer_load_dwordx4 v{vWOA}, s[{sWO}:{sWO+3}], s{sT2} offen lds") for mm in range(7)]

    def wfrag(self, dst, part, t):
        return [f"ds_read_b64_tr_b16 {vr(dst+2*sub, 2)}, v{vWR} offset:{part*PART + t*1024 + sub*256}" for sub in range(2)]

    def next_read_chunk(self):
        return L(f"s_lshl_b32 s{sT3}, s{sCR}, 12\ns_add_u32 s{sCR}, s{sCR}, 1\ns_cmp_eq_u32 s{sCR}, 7\ns_cselect_b32 s{sCR}, 0, s{sCR}\nv_add_u32 v{vWR}, s{sT3}, v{vWR0}")

    def feat_A(self, acc, dst):
        o = []
        E = vU
        for r in range(16): o.append(f"v_mul_f32 v{E+r}, s{sC}, v{acc+r}")
        for r in range(16):
            o.append(f"v_exp_f32 v{E+r}, v{E+r} clamp")
            o.append(f"v_max_f32 v{acc+r}, s{sEPS}, v{acc+r}")
        for r in range(16): o.append(f"v_add_f32 v{acc+r}, v{acc+r}, v{E+r}")
        for p in range(8): o.append(f"v_cvt_pk_bf16_f32 v{dst+p}, v{acc+2*p}, v{acc+2*p+1}")
        return o

    def feat_B(self, acc, dstp, dstm, isq):
        o = []; A = lambda s: o.extend(L(s))
        P = vU
        for p in range(8): A(f"v_cvt_pk_bf16_f32 v{dstp+p}, v{acc+2*p}, v{acc+2*p+1}")
        A(f"v_mfma_f32_32x32x16_bf16 {vr(P,16)}, {vr(vPH,4)}, {vr(dstp,4)}, 0")
        A(f"v_mfma_f32_32x32x16_bf16 {vr(P,16)}, {vr(vPH+4,4)}, {vr(dstp+4,4)}, {vr(P,16)}")
        m1, m2, s3, s4 = vT, vT+1, vT+2, vT+3
        A(f"v_max3_f32 v{m1}, v{P}, v{P+1}, v{P+2}")
        A(f"v_max3_f32 v{m2}, -v{P}, -v{P+1}, -v{P+2}")
        for r in range(3, 15, 2):
            A(f"v_max3_f32 v{m1}, v{m1}, v{P+r}, v{P+r+1}")
            A(f"v_max3_f32 v{m2}, v{m2}, -v{P+r}, -v{P+r+1}")
        A(f"v_max_f32 v{m1}, v{m1}, v{P+15}")
        A(f"v_max_f32_e64 v{m2}, v{m2}, -v{P+15}")
        A(f"v_permlane32_swap_b32 v{m1}, v{m2}")
        A(f"v_max_f32 v{m1}, v{m1}, v{m2}")
        A(f"v_mul_f32 v{m1}, s{sC}, v{m1}")
        A(f"v_mov_b32 v{m2}, v{m1}")
        A(f"v_permlane32_swap_b32 v{m1}, v{m2}")
        Ep = acc; Em = P
        for r in range(16):
            A(f"v_fma_f32 v{Ep+r}, s{sC}, v{P+r}, -v{m1}")
            A(f"v_fma_f32 v{Em+r}, -s{sC}, v{P+r}, -v{m2}")
        pads = [3, 7, 11, 15]; rest = [r for r in range(16) if r not in pads]
        for r in pads + rest:
            A(f"v_exp_f32 v{Ep+r}, v{Ep+r}")
            A(f"v_exp_f32 v{Em+r}, v{Em+r}")
        s1, s2 = m1, m2
        A(f"v_add_f32 v{s3}, v{Ep+pads[0]}, v{Ep+pads[1]}\nv_add_f32 v{s4}, v{Em+pads[0]}, v{Em+pads[1]}")
        A(f"v_add_f32 v{s1}, v{Ep+rest[0]}, v{Ep+rest[1]}\nv_add_f32 v{s2}, v{Em+rest[0]}, v{Em+rest[1]}")
        for i in (2, 3):
            A(f"v_add_f32 v{s3}, v{s3}, v{Ep+pads[i]}\nv_add_f32 v{s4}, v{s4}, v{Em+pads[i]}")
            A(f"v_add_f32 v{s1}, v{s1}, v{Ep+rest[i]}\nv_add_f32 v{s2}, v{s2}, v{Em+rest[i]}")
        A(f"v_cndmask_b32 v{s3}, v{s3}, 0, s[{sUP}:{sUP+1}]\nv_cndmask_b32 v{s4}, v{s4}, 0, s[{sUP}:{sUP+1}]")
        for i in range(4, 12, 2):
            A(f"v_add_f32 v{s1}, v{s1}, v{Ep+rest[i]}\nv_add_f32 v{s2}, v{s2}, v{Em+rest[i]}")
            A(f"v_add_f32 v{s3}, v{s3}, v{Ep+rest[i+1]}\nv_add_f32 v{s4}, v{s4}, v{Em+rest[i+1]}")
        A(f"v_add_f32 v{s1}, v{s1}, v{s3}\nv_add_f32 v{s2}, v{s2}, v{s4}")
        A(f"v_permlane32_swap_b32 v{s1}, v{s2}")
        A(f"v_add_f32 v{s1}, v{s1}, v{s2}")
        if not isq:
            A(f"v_rcp_f32 v{s1}, v{s1}")
            A(f"v_mov_b32 v{s2}, v{s1}")
            A(f"v_permlane32_swap_b32 v{s1}, v{s2}")
            for p in range(8):
                A(f"v_mul_f32 v{Ep+2*p}, v{s1}, v{Ep+2*p}\nv_mul_f32 v{Ep+2*p+1}, v{s1}, v{Ep+2*p+1}")
                A(f"v_cvt_pk_bf16_f32 v{dstp+p}, v{Ep+2*p}, v{Ep+2*p+1}")
        else:
            A(f"v_mov_b32 v{s2}, v{s1}")
            A(f"v_permlane32_swap_b32 v{s1}, v{s2}")
            A(f"v_rcp_f32 v{s2}, v{s2}")
            A(f"v_mul_f32 v{vS}, s{sEPS}, v{s1}")
            for p in range(8): A(f"v_cvt_pk_bf16_f32 v{dstp+p}, v{Ep+2*p}, v{Ep+2*p+1}")
            A(f"v_mul_f32 v{s2}, v{s1}, v{s2}")
        for p in range(8):
            A(f"v_mul_f32 v{Em+2*p}, v{s2}, v{Em+2*p}\nv_mul_f32 v{Em+2*p+1}, v{s2}, v{Em+2*p+1}")
            A(f"v_cvt_pk_bf16_f32 v{dstm+p}, v{Em+2*p}, v{Em+2*p+1}")
        return o

    def addr_late(self, B, br):
        t0, t1, t2, t3 = vT, vT+1, vT+2, vT+3
        g = []
        g.append(L(f"""v_and_b32 v{t0}, 31, v{vL}
            v_lshrrev_b32 v{t1}, 5, v{vL}
            v_and_b32 v{t2}, 7, v{vL}
            v_bfe_u32 v{t3}, v{vL}, 2, 2
            v_lshl_add_u32 v{t2}, v{t2}, 2, v{t3}
            v_xor_b32 v{t2}, v{t2}, v{t1}
            v_lshlrev_b32 v{t0}, 8, v{t0}
            v_add_u32 v{t0}, s{sXM}, v{t0}
            v_lshl_add_u32 v{vTW}, v{t2}, 3, v{t0}
            v_lshrrev_b32 v{t0}, 2, v{vL}
            v_and_b32 v{t1}, 7, v{t0}
            v_lshrrev_b32 v{t2}, 2, v{t0}
            v_lshl_add_u32 v{t1}, v{t1}, 2, v{t2}
            v_and_b32 v{t2}, 3, v{vL}
            v_xor_b32 v{t1}, v{t1}, v{t2}
            v_lshlrev_b32 v{t0}, 8, v{t0}
            v_lshl_add_u32 v{t0}, v{t1}, 3, v{t0}
            v_add_u32 v{t0}, {R3}, v{t0}""")
            + (L(f"s_and_b32 s{sFT}, s{sWV}, 3\ns_lshr_b32 s{sET}, s{sWV}, 2") if B else L(f"s_and_b32 s{sFT}, s{sWV}, 1\ns_bfe_u32 s{sET}, s{sWV}, 0x10001"))
            + L(f"""s_lshl_b32 s{sT0}, s{sFT}, 5
            s_lshl_b32 s{sT1}, s{sET}, 5
            s_add_u32 s{sT1}, s{sT1}, 128
            v_xor_b32 v{vTA}, s{sT0}, v{t0}
            v_xor_b32 v{vTB}, s{sT1}, v{t0}
            v_lshlrev_b32 v{vT+10}, 7, v{vL}
            s_mul_i32 s{sOM7}, s{sWV}, {7*1024}
            s_mul_i32 s{sOS7}, s{sWV}, {7*3584}"""))
        g[0] = [x for x in g[0]]
        x = L(f"""v_lshrrev_b32 v{t0}, 4, v{vL}
            v_lshlrev_b32 v{t1}, 2, v{t0}
            v_sub_u32 v{t1}, v{vL}, v{t1}
            s_and_b32 s{sT0}, s{sRO}, 3
            s_cmp_eq_u32 s{sT0}, 3
            s_cselect_b32 s{sT1}, 7, 15
            v_and_b32 v{t1}, s{sT1}, v{t1}
            v_mul_u32_u24 v{t0}, 896, v{t0}
            v_lshl_add_u32 v{vWOA}, v{t1}, 4, v{t0}
            s_lshl_b32 s{sT0}, s{sT0}, 8
            v_add_u32 v{vWOA}, s{sT0}, v{vWOA}
            v_lshrrev_b32 v{t0}, 5, v{vL}
            v_bfe_u32 v{t1}, v{vL}, 2, 2
            v_mul_u32_u24 v{t2}, 7, v{t0}
            v_add_u32 v{t2}, v{t2}, v{t1}
            v_bfe_u32 v{t0}, v{vL}, 4, 1
            v_and_b32 v{t1}, 3, v{vL}
            v_lshl_add_u32 v{t1}, v{t0}, 2, v{t1}
            v_lshlrev_b32 v{t1}, 3, v{t1}
            s_and_b32 s{sT0}, s{sWV}, 3
            s_lshl_b32 s{sT0}, s{sT0}, 6""")
        for t in range(2):
            x += L(f"""v_add_u32 v{t3}, {14*t}, v{t2}
                v_lshlrev_b32 v{t0}, 6, v{t3}
                v_add3_u32 v{t0}, v{t0}, v{t1}, s{sT0}
                v_and_b32 v{t0}, 255, v{t0}
                v_lshl_add_u32 v{vWO+t}, v{t3}, 8, v{t0}
                v_add_u32 v{vWO+2+t}, {R3}, v{vWO+t}""")
        g.append(x)
        kw = (f"""v_bfe_u32 v{t0}, v{vL}, 4, 1
            v_lshrrev_b32 v{t2}, 5, v{vL}
            v_lshlrev_b32 v{t0}, 3, v{t0}
            v_lshlrev_b32 v{vFA}, 12, v{t2}
            v_and_b32 v{t3}, 31, v{vL}
            v_lshl_add_u32 v{vFA}, v{t3}, 4, v{vFA}
            v_and_b32 v{t3}, 15, v{vL}
            v_lshl_add_u32 v{t3}, v{t2}, 4, v{t3}
            v_lshlrev_b32 v{vFL}, 4, v{t3}""" if B else f"""v_lshrrev_b32 v{t0}, 4, v{vL}
            v_and_b32 v{t2}, 1, v{t0}
            v_lshrrev_b32 v{t0}, 1, v{t0}
            v_lshlrev_b32 v{t0}, 3, v{t0}""")
        g.append(L(kw + f"""
            v_and_b32 v{t1}, 15, v{vL}
            s_lshl_b32 s{sT0}, s{sET}, 4
            v_add_u32 v{t1}, s{sT0}, v{t1}
            v_mul_u32_u24 v{t1}, 144, v{t1}
            v_lshl_add_u32 v{t0}, v{t2}, 4, v{t0}
            s_lshl_b32 s{sT0}, s{sFT}, 5
            s_add_u32 s{sT0}, s{sT0}, {KVT}
            v_add3_u32 v{vKW}, v{t1}, v{t0}, s{sT0}
            v_and_b32 v{t0}, 3, v{vL}
            v_bfe_u32 v{t1}, v{vL}, 3, 1
            v_lshl_add_u32 v{t0}, v{t1}, 2, v{t0}
            v_bfe_u32 v{t1}, v{vL}, 4, 1
            v_bfe_u32 v{t2}, v{vL}, 2, 1
            v_lshl_add_u32 v{t1}, v{t1}, 1, v{t2}
            v_mad_u32_u24 v{t1}, v{t1}, 7, v{t0}
            v_cmp_eq_u32 vcc, 7, v{t0}
            v_cndmask_b32_e64 v{t1}, v{t1}, 28, vcc
            v_mul_u32_u24 v{t1}, 144, v{t1}
            v_lshrrev_b32 v{t2}, 5, v{vL}
            v_lshl_add_u32 v{t1}, v{t2}, 4, v{t1}
            v_add_u32 v{vKR}, {KVT}, v{t1}"""))
        x = L(f"""v_and_b32 v{t0}, 31, v{vL}
            v_lshrrev_b32 v{t1}, 5, v{vL}
            v_mul_u32_u24 v{t0}, {OUTP}, v{t0}
            v_lshl_add_u32 v{t0}, v{t1}, 3, v{t0}
            s_lshr_b32 s{sT0}, s{sWV}, 2
            s_mul_i32 s{sT0}, s{sT0}, {32*OUTP}
            s_and_b32 s{sT1}, s{sWV}, 3
            s_lshl_b32 s{sT1}, s{sT1}, 6
            s_add_u32 s{sT0}, s{sT0}, s{sT1}
            s_add_u32 s{sT0}, s{sT0}, {OSTG}
            v_add_u32 v{vSTG}, s{sT0}, v{t0}
            v_lshrrev_b32 v{t2}, 4, v0
            v_and_b32 v{t3}, 15, v0
            v_lshlrev_b32 v{t1}, 4, v{t3}
            v_mul_u32_u24 v{vOL}, {OUTP}, v{t2}
            s_mov_b32 s{sT2}, {OSTG}
            v_add3_u32 v{vOL}, v{vOL}, v{t1}, s{sT2}
            v_mul_u32_u24 v{vOG}, 1792, v{t2}
            v_add_u32 v{vOG}, v{vOG}, v{t1}
            s_and_b32 s{sT1}, s{sRO}, 3
            s_cmp_eq_u32 s{sT1}, 3
            s_cselect_b32 s{sT2}, 8, 16
            v_cmp_le_u32 vcc, s{sT2}, v{t3}
            v_mov_b32 v{t1}, 0x40000000
            v_cndmask_b32 v{vOG}, v{vOG}, v{t1}, vcc
            s_lshl_b32 s{sT0}, s{sRB}, 2
            s_lshr_b32 s{sT2}, s{sRO}, 2
            s_add_u32 s{sT0}, s{sT0}, s{sT2}
            s_mul_i32 s{sT0}, s{sT0}, {64*1792}
            s_lshl_b32 s{sT1}, s{sT1}, 8
            s_add_u32 s{sT0}, s{sT0}, s{sT1}
            s_add_u32 s{sOUTB}, s{sT0}, {br*896}
            s_lshl_b32 s{sT0}, s{sWV}, 4
            s_add_u32 s{sT0}, s{sT0}, s{sH}
            s_lshl_b32 s{sT0}, s{sT0}, 11
            s_add_u32 s{sOW}, s{sT0}, s{sOB}""")
        g.append(x)
        return g

    def branch(self, br):
        a = self.a; self.br = br; self.ns = 1; o = self.o
        B = (br == 1); S2 = o['S2']
        px, pw, pwo = (42, 44, 48) if B else (36, 38, 40)
        t0, t1, t2, t3 = vT, vT+1, vT+2, vT+3
        a("s_waitcnt lgkmcnt(0)")
        a(f"s_mov_b32 s{sX}, s{px}\ns_mov_b32 s{sX+1}, s{px+1}\ns_mov_b32 s{sW}, s{pw}\ns_mov_b32 s{sW+1}, s{pw+1}")
        self.xstamp('first')
        self.issue_chunk(0, 0)
        a(f"s_mov_b32 s{sWS}, s54\ns_mov_b32 s{sWS+1}, s55\ns_mov_b32 s{sWS+2}, 0x10000000\ns_mov_b32 s{sWS+3}, 0x20000")
        a(f"v_mov_b32 v{t1}, {E_OFF + br*256}")
        a(f"v_lshlrev_b32 v{vL16}, 4, v{vL}")
        a("s_mov_b64 exec, 1")
        a(f"buffer_load_dword v{vE}, v{t1}, s[{sWS}:{sWS+3}], 0 offen sc1")
        a("s_mov_b64 exec, -1")
        if B:
            a(f"s_mov_b32 s{sPH}, s46\ns_mov_b32 s{sPH+1}, s47\ns_mov_b32 s{sPH+2}, 25088\ns_mov_b32 s{sPH+3}, 0x20000")
            a(f"s_cmp_lt_u32 s{sWV}, 6\ns_cbranch_scc1 L_noph")
            a(f"s_sub_u32 s{sT0}, s{sWV}, 6\ns_lshl_b32 s{sT0}, s{sT0}, 10\ns_add_u32 m0, s{sT0}, {WPHI}\ns_mul_i32 s{sT1}, s{sH}, 1568\ns_add_u32 s{sT1}, s{sT1}, s{sT0}")
            a(f"buffer_load_dwordx4 v{vL16}, s[{sPH}:{sPH+3}], s{sT1} offen lds")
            a("L_noph:")
        self.issue_chunk(1, 1)
        a(f"s_lshl_b32 s{sBI}, s{sRB}, 4\ns_add_u32 s{sBI}, s{sBI}, s{sH}")
        tbl = [0,1,3,2,4,5,7,6,8,11,10,9,12,15,14,13] if o['role'] else list(range(16))
        lo = sum(tbl[i] << (4*i) for i in range(8)); hi = sum(tbl[8+i] << (4*i) for i in range(8))
        a(f"s_mov_b32 s{sSV}, {lo:#x}\ns_mov_b32 s{sSV+1}, {hi:#x}\ns_lshl_b32 s{sT0}, s{sH}, 2\ns_lshr_b64 s[{sSV}:{sSV+1}], s[{sSV}:{sSV+1}], s{sT0}\ns_and_b32 s{sRO}, s{sSV}, 15")
        a(f"s_mov_b32 s{sWO}, s{pwo}\ns_mov_b32 s{sWO+1}, s{pwo+1}\ns_mov_b32 s{sWO+2}, 401408\ns_mov_b32 s{sWO+3}, 0x20000")
        a(f"s_mov_b32 s{sOUT}, s50\ns_mov_b32 s{sOUT+1}, s51\ns_mov_b32 s{sOUT+2}, 3670016\ns_mov_b32 s{sOUT+3}, 0x20000")
        a(f"s_mov_b32 s{sUP}, 0\ns_mov_b32 s{sUP+1}, -1\ns_mov_b32 s{sC}, {LOG2E:#x}\ns_mov_b32 s{sEPS}, {EPS:#x}\ns_mov_b32 s{sM16}, 0xffff")
        a(f"s_mov_b32 s{sONE}, 0x3f80\ns_mov_b32 s{sONH}, 0x3f800000")
        a(f"v_and_b32 v{t0}, 31, v{vL}\nv_lshrrev_b32 v{t1}, 5, v{vL}")
        a(f"v_bfe_u32 v{t2}, v{vL}, 1, 3\nv_xor_b32 v{t2}, v{t2}, v{t1}")
        a(f"v_lshlrev_b32 v{t3}, 7, v{t0}\nv_add_u32 v{t3}, s{sXM}, v{t3}")
        a(f"v_lshl_add_u32 v{vXR}, v{t2}, 4, v{t3}")
        for t in range(1, 4): a(f"v_xor_b32 v{vXR+t}, {32*t}, v{vXR}")
        a(f"v_bfe_u32 v{t2}, v{vL}, 2, 2\nv_lshl_add_u32 v{t2}, v{t1}, 3, v{t2}\nv_lshlrev_b32 v{t2}, 6, v{t2}")
        a(f"v_bfe_u32 v{t3}, v{vL}, 4, 1\nv_and_b32 v{t0}, 3, v{vL}\nv_lshl_add_u32 v{t3}, v{t3}, 2, v{t0}\nv_min_u32 v{t3}, 6, v{t3}")
        a(f"v_lshlrev_b32 v{vCC}, 3, v{t3}")
        a(f"s_and_b32 s{sT0}, s{sH}, 1\ns_lshl_b32 s{sT0}, s{sT0}, 3")
        a(f"v_add3_u32 v{vWR0}, v{t2}, v{vCC}, s{sT0}")
        if not B:
            for r in range(16): a(f"v_mov_b32 v{vK+r}, s{sEPS}\nv_mov_b32 v{vQ+r}, s{sEPS}")
        if B: a(f"s_lshl_b32 s{sPB}, s{sH}, 15\ns_add_u32 s{sPB}, s{sPB}, {P_OFF + 16*65536}\ns_lshl_b32 s{sT0}, s{sWV}, 9\ns_add_u32 s{sPB}, s{sPB}, s{sT0}")
        else: a(f"s_lshl_b32 s{sPB}, s{sH}, 15\ns_add_u32 s{sPB}, s{sPB}, {P_OFF}\ns_and_b32 s{sT0}, s{sWV}, 3\ns_lshl_b32 s{sT0}, s{sT0}, 10\ns_add_u32 s{sPB}, s{sPB}, s{sT0}")
        a(f"s_lshl_b32 s{sOB}, s{sRB}, 18\ns_add_u32 s{sOB}, s{sOB}, {O_OFF + br*8*262144}")
        a(f"s_getreg_b32 s{sXCC}, hwreg(HW_REG_XCC_ID, 0, 4)")
        late = self.addr_late(B, br)
        if o['late_pro']:
            for x in late: self.emit(x)
        self.stamp()
        F = [vWF, vWF+4, vWF+8, vWF+12]
        NW = 4 if S2 else 5
        for j in range(7):
            slot = j & 1
            self.emit(self.next_read_chunk())
            a(f"s_waitcnt vmcnt({NW if j < 6 else (2 if S2 else 0)})")
            a("s_barrier")
            self.xstamp(f'c{j}')
            for t in range(4):
                a(f"ds_read_b128 {vr(vXF+16*j+4*t,4)}, v{vXR+t} offset:{slot*4096}")
            if S2:
                for t in range(4): self.emit(self.wfrag(F[t], 0, t))
            else:
                self.emit(self.wfrag(F[0], 0, 0) + self.wfrag(F[1], 1, 0) + self.wfrag(F[2], 0, 1) + self.wfrag(F[3], 1, 1))
            if j == 0:
                a(f"v_readfirstlane_b32 s{sT0}, v{vE}")
                a(f"s_lshr_b32 s{sT1}, s{sT0}, 16\ns_add_u32 s{sT0}, s{sT0}, 1\ns_and_b32 s{sT0}, s{sT0}, 0x3fff")
                a(f"s_add_u32 s{sT2}, s{sT0}, 1\ns_and_b32 s{sT2}, s{sT2}, 0x3fff\ns_cmp_eq_u32 s{sT0}, s{sT1}\ns_cselect_b32 s{sTAG}, s{sT2}, s{sT0}")
                a(f"s_lshl_b32 s{sTAGHI}, s{sTAG}, 16\ns_or_b32 s{sXCC}, s{sXCC}, s{sTAGHI}")
            def issue():
                if j < 5: self.issue_chunk(slot, j+2)
                elif S2: self.emit(self.wpart(2*(j-5), 1792, PART) + self.wpart(2*(j-5)+1, 1792, PART))
            if not o['late_issue']:
                a("s_waitcnt lgkmcnt(8)")
                issue()
            for t in range(4):
                xf = vr(vXF+16*j+4*t, 4)
                first = (j == 0 and t == 0)
                kc = '0' if (first and B) else vr(vK,16)
                if S2:
                    a(f"s_waitcnt lgkmcnt({6-2*t})")
                    a(f"v_mfma_f32_32x32x16_bf16 {vr(vK,16)}, {vr(F[t],4)}, {xf}, {kc}")
                else:
                    fk, fv = (F[0], F[1]) if t % 2 == 0 else (F[2], F[3])
                    a(f"s_waitcnt lgkmcnt({4 if t < 3 else 0})")
                    a(f"v_mfma_f32_32x32x16_bf16 {vr(vK,16)}, {vr(fk,4)}, {xf}, {kc}")
                    a(f"v_mfma_f32_32x32x16_bf16 {vr(vV,16)}, {vr(fv,4)}, {xf}, {'0' if first else vr(vV,16)}")
                    if t < 2: self.emit(self.wfrag(fk, 0, t+2) + self.wfrag(fv, 1, t+2))
                if o['late_issue'] and t == (3 if S2 else 1): issue()
            if 1 <= j <= 4 and not o['late_pro']: self.emit(late[j-1])
            if j == 5 and B:
                a(f"v_and_b32 v{t0}, 7, v{vL}\nv_min_u32 v{t0}, 6, v{t0}\nv_bfe_u32 v{t1}, v{vL}, 3, 2\nv_mad_u32_u24 v{t0}, v{t1}, 7, v{t0}")
                a(f"v_lshrrev_b32 v{t1}, 5, v{vL}\nv_mul_u32_u24 v{t1}, {4*56}, v{t1}\nv_lshl_add_u32 v{t0}, v{t0}, 1, v{t1}\nv_add_u32 v{t0}, {WPHI}, v{t0}")
                for u in range(2):
                    for jj in range(8):
                        f = 16*u + 8*(jj >> 2) + (jj & 3)
                        a(f"ds_read_u16 v{(vT+4 if jj & 1 else vPH+4*u)+(jj>>1)}, v{t0} offset:{f*56}")
                    a("s_waitcnt lgkmcnt(0)")
                    for d in range(4): a(f"v_lshl_or_b32 v{vPH+4*u+d}, v{vT+4+d}, 16, v{vPH+4*u+d}")
                a(f"v_cndmask_b32 v{vPH+6}, v{vPH+6}, 0, s[{sUP}:{sUP+1}]\nv_cndmask_b32 v{vPH+7}, v{vPH+7}, 0, s[{sUP}:{sUP+1}]")
        self.stamp()
        PKp = vT + 8
        PKm = vK
        feat = self.feat_B(vK, PKp, PKm, False) if B else self.feat_A(vK, PKp)
        def rdstep(n, part):
            j, t = divmod(n, 4)
            return (self.next_read_chunk() if t == 0 else []) + self.wfrag(F[n % 4], part, t)
        qg = [self.wpart(m, 0, R2) for m in range(4)]
        ex = []
        if o['wotouch']:
            a(f"s_mul_i32 s{sT0}, s{sWV}, 13\nv_add_u32 v{t0}, s{sT0}, v{vL}\nv_min_u32 v{t0}, 97, v{t0}\nv_mul_u32_u24 v{t1}, 9363, v{t0}\nv_lshrrev_b32 v{t1}, 16, v{t1}")
            a(f"v_mul_u32_u24 v{t2}, {896 - 7*128}, v{t1}\nv_lshl_add_u32 v{vT+6}, v{t0}, 7, v{t2}")
            ex.append(L(f"s_mul_i32 s{sT0}, s{sIDX}, {14*896}\ns_mov_b64 exec, 0x1fff\nbuffer_load_dword v{vT+7}, v{vT+6}, s[{sWO}:{sWO+3}], s{sT0} offen\ns_mov_b64 exec, -1"))
        if o['otouch']:
            ex.append(L(f"s_mov_b64 exec, 0xffff\nbuffer_load_dword v{vT+4}, v{vT+10 if False else vE}, s[{sWS}:{sWS+3}], s{sOW} offen\ns_mov_b64 exec, -1"))
        ex.append(L(f"s_lshl_b32 s{sT0}, s{sBI}, 3\ns_add_u32 s{sT0}, s{sT0}, s{sWV}\ns_lshl_b32 s{sT0}, s{sT0}, 2\ns_add_u32 s{sT0}, s{sT0}, {X_OFF + br*128*XS}\n"
                    f"v_mov_b32 v{vT+5}, s{sXCC}\ns_mov_b64 exec, 1\nbuffer_store_dword v{vT+5}, v{vL16}, s[{sWS}:{sWS+3}], s{sT0} offen sc1\ns_mov_b64 exec, -1"))
        a(f"v_lshlrev_b32 v{vE}, 7, v{vL}")
        if S2:
            a(f"s_mov_b32 s{sCR}, s{sROT}")
            def mf(n, left):
                return [f"s_waitcnt lgkmcnt({left})", f"v_mfma_f32_32x32x16_bf16 {vr(vV,16)}, {vr(F[n%4],4)}, {vr(vXF+4*n,4)}, {'0' if n == 0 else vr(vV,16)}"]
            side = [["s_waitcnt vmcnt(2)", "s_barrier"] + rdstep(0, 1) + rdstep(1, 1) + rdstep(2, 1)]
            extra = {13: qg[0], 16: qg[1], 19: qg[2], 22: qg[3]}
            for i, e in enumerate(ex): extra[23 + 2*i] = e
            for n in range(28):
                grp = mf(n, 2*min(27 - n, 2))
                if n == 12: grp += ["s_waitcnt vmcnt(0)", "s_barrier"]
                grp += extra.get(n, [])
                if n + 3 < 28: grp += rdstep(n+3, 1)
                side.append(grp)
            self.emit(merge(feat, side, 10 if B else 0, len(feat) - 4))
        else:
            self.emit(merge(feat, qg + ex, 10 if B else 0, len(feat) - 4))
        nex = len(ex)
        self.xstamp('kfeat')
        a(f"v_cndmask_b32 v{vV+12}, v{vV+12}, 1.0, s[{sUP}:{sUP+1}]")
        segs = [(0, PKp)] + ([(1, PKm)] if B else [])
        n = 0
        for seg, src in segs:
            for g in range(4):
                c = (seg*8 + 2*g) * 8
                ta = vT + (n % 4); n += 1
                if c: a(f"v_xor_b32 v{ta}, {c}, v{vTW}")
                a(f"ds_write_b64 v{ta if c else vTW}, {vr(src+2*g,2)}")
        PV = vU
        for g in range(4):
            a(f"v_cvt_pk_bf16_f32 v{PV+2*g}, v{vV+4*g}, v{vV+4*g+1}\nv_cvt_pk_bf16_f32 v{PV+2*g+1}, v{vV+4*g+2}, v{vV+4*g+3}")
            ta = vT + (n % 4); n += 1
            a(f"v_xor_b32 v{ta}, {(16+2*g)*8}, v{vTW}")
            a(f"ds_write_b64 v{ta}, {vr(PV+2*g,2)}")
        a("s_waitcnt lgkmcnt(0)")
        a("s_barrier")
        self.stamp()
        w0, w1 = self.issue_wo(0), self.issue_wo(1)
        KV = vU + 8
        if not B: a(f"s_cmp_ge_u32 s{sWV}, 4\ns_cbranch_scc1 L_nokv{br}")
        fr = [vK, vK+8, vV, vV+8]
        def rd(st):
            b = fr[st % 4]
            for sub in range(2): a(f"ds_read_b64_tr_b16 {vr(b+2*sub,2)}, v{vTA} offset:{(32*st+16*sub)*256}")
            for sub in range(2): a(f"ds_read_b64_tr_b16 {vr(b+4+2*sub,2)}, v{vTB} offset:{(32*st+16*sub)*256}")
        for st in range(3): rd(st)
        a(f"v_mov_b32 v{t2}, s{sTAGHI if B else sTAG}\ns_mov_b32 s{sT1}, 0xffff0000")
        a(f"s_lshl_b32 s{sT0}, s{sRB}, 12\ns_add_u32 s{sT0}, s{sT0}, s{sPB}")
        for st in range(8):
            if st + 3 < 8: rd(st+3)
            a(f"s_waitcnt lgkmcnt({4*min(7 - st, 3)})")
            b = fr[st % 4]
            a(f"v_mfma_f32_16x16x32_bf16 {vr(KV,4)}, {vr(b,4)}, {vr(b+4,4)}, {'0' if st == 0 else vr(KV,4)}")
        if B:
            a(f"v_cvt_pk_bf16_f32 v{KV}, v{KV}, v{KV+1}\nv_cvt_pk_bf16_f32 v{KV+1}, v{KV+2}, v{KV+3}")
            a(f"v_permlane16_swap_b32 v{KV}, v{KV+2}\nv_permlane16_swap_b32 v{KV+1}, v{KV+3}")
            a(f"v_and_or_b32 v{KV+3}, v{KV+3}, s{sM16}, v{t2}")
            a(f"s_mov_b32 exec_lo, s{sM16}\ns_mov_b32 exec_hi, s{sM16}")
            a(f"buffer_store_dwordx4 {vr(KV,4)}, v{vFL}, s[{sWS}:{sWS+3}], s{sT0} offen sc1")
            a("s_mov_b64 exec, -1")
        else:
            a(f"v_cvt_pk_bf16_f32 v{t0}, v{KV}, v{KV+1}\nv_cvt_pk_bf16_f32 v{t1}, v{KV+2}, v{KV+3}")
            a(f"v_lshl_or_b32 v{KV}, v{t0}, 16, v{t2}\nv_and_or_b32 v{KV+1}, v{t0}, s{sT1}, v{t2}")
            a(f"v_lshl_or_b32 v{KV+2}, v{t1}, 16, v{t2}\nv_and_or_b32 v{KV+3}, v{t1}, s{sT1}, v{t2}")
            a(f"buffer_store_dwordx4 {vr(KV,4)}, v{vL16}, s[{sWS}:{sWS+3}], s{sT0} offen sc1")
        self.xstamp('pub')
        a(f"s_waitcnt vmcnt({1+nex})")
        if not B: a(f"s_branch L_kvj{br}\nL_nokv{br}:\ns_waitcnt vmcnt({nex})\nL_kvj{br}:")
        a("s_barrier")
        self.stamp()
        a(f"s_mov_b32 s{sCR}, s{sROT}")
        G0 = vK
        NH = 4 if B else 8
        def h1load(p):
            if B: return L(f"s_add_u32 s{sT0}, s{sPB}, {p*8192}\nbuffer_load_dwordx4 {vr(G0+4*p,4)}, v{vFA}, s[{sWS}:{sWS+3}], s{sT0} offen sc1")
            return L(f"s_add_u32 s{sT0}, s{sPB}, {p*4096}\nbuffer_load_dwordx4 {vr(G0+4*p,4)}, v{vL16}, s[{sWS}:{sWS+3}], s{sT0} offen sc1")
        after = {}
        for i in range(7): after[2*i] = list(w0[i])
        h1at, h1st = o['h1at'], o['h1st']
        after[15] = L(f"v_and_b32 v{t2}, 15, v{vL}\nv_mul_u32_u24 v{t2}, {XS}, v{t2}\ns_mul_i32 s{sT0}, s{sRB}, {16*XS}\ns_add_u32 s{sT0}, s{sT0}, {X_OFF + br*128*XS}\nbuffer_load_dword v{vE}, v{t2}, s[{sWS}:{sWS+3}], s{sT0} offen sc1")
        for p in range(NH):
            pos = min(h1at + (h1st*p if B else (h1st*p)//2), 27)
            grp = h1load(p)
            if not B: grp = L(f"s_cmp_ge_u32 s{sWV}, 4\ns_cselect_b64 exec, 1, -1") + grp + ["s_mov_b64 exec, -1"]
            after[pos] = after.get(pos, []) + grp
        self.emit(rdstep(0, 2) + rdstep(1, 2) + rdstep(2, 2))
        for n in range(28):
            a(f"s_waitcnt lgkmcnt({2*min(27-n, 2)})")
            a(f"v_mfma_f32_32x32x16_bf16 {vr(vQ,16)}, {vr(F[n%4],4)}, {vr(vXF+4*n,4)}, {'0' if (n == 0 and B) else vr(vQ,16)}")
            self.emit(after.get(n, []))
            if n + 3 < 28: self.emit(rdstep(n+3, 2))
        self.xstamp('qend')
        a(f"s_waitcnt vmcnt({1+NH})")
        a("s_barrier")
        self.stamp()
        PQp, PQm = vWF, vWF+8
        feat = self.feat_B(vQ, PQp, PQm, True) if B else self.feat_A(vQ, PQp)
        def wofr(hh):
            r = []
            for t in range(2):
                ad = vWO + t + (2 if hh >= 8 else 0)
                d = vXF + (hh*2+t)*4
                for sub in range(2): r.append(f"ds_read_b64_tr_b16 {vr(d+2*sub,2)}, v{ad} offset:{(28*(hh%8)+4*sub)*256}")
            return r
        def womask(hh): return [f"v_and_b32 v{vXF+(hh*2+t)*4+3}, s{sM16}, v{vXF+(hh*2+t)*4+3}" for t in range(2)]
        side = []
        for hh in range(8):
            g = wofr(hh)
            if hh >= 2: g += ["s_waitcnt lgkmcnt(8)"] + womask(hh-2)
            if hh >= 1: g += w1[hh-1]
            side.append(g)
        side.append(["s_waitcnt lgkmcnt(0)"] + womask(6) + womask(7))
        self.emit(merge(feat, side, 2, len(feat) - 2))
        self.stamp()
        if not B: a(f"s_cmp_ge_u32 s{sWV}, 4\ns_cbranch_scc1 L_nored{br}")
        a(f"s_mov_b32 s{sRETRY}, 0")
        mm = vT+8
        if B:
            S = vV
            a(f"v_mov_b32 v{S+7}, 0")
            a(f"L_h1_{br}:")
            for p in range(4):
                a(f"s_waitcnt vmcnt({7+3-p})")
                for i in range(7):
                    a(f"v_dot2_f32_bf16 v{S+i}, v{G0+4*p+(i>>1)}, s{sONH if i & 1 else sONE}, {'0' if p == 0 else 'v%d' % (S+i)}")
                if p == 0: a(f"v_xor_b32 v{mm}, s{sTAGHI}, v{G0+3}")
                else: a(f"v_xor_b32 v{mm+1}, s{sTAGHI}, v{G0+4*p+3}\nv_or_b32 v{mm}, v{mm}, v{mm+1}")
            a(f"v_cmp_lt_u32 vcc, s{sM16}, v{mm}")
        else:
            a(f"v_lshrrev_b32 v{t0}, 4, v{vL}")
            a(f"s_and_b32 s{sT0}, s{sFT}, 1\ns_lshl_b32 s{sT0}, s{sT0}, 2\nv_add_u32 v{t1}, s{sT0}, v{t0}\nv_cmp_eq_u32 s[{sSV}:{sSV+1}], 7, v{t1}")
            a(f"L_h1_{br}:")
            for p in range(8):
                a(f"s_waitcnt vmcnt({14-p})")
                for i in range(4): a(f"v_xor_b32 v{G0+4*p+i}, s{sTAG}, v{G0+4*p+i}")
                if p == 0:
                    a(f"v_or3_b32 v{mm}, v{G0}, v{G0+1}, v{G0+2}\nv_or_b32 v{mm}, v{mm}, v{G0+3}")
                else:
                    a(f"v_or3_b32 v{mm}, v{mm}, v{G0+4*p}, v{G0+4*p+1}\nv_or3_b32 v{mm}, v{mm}, v{G0+4*p+2}, v{G0+4*p+3}")
                    for i in range(4): a(f"v_add_f32 v{G0+i}, v{G0+i}, v{G0+4*p+i}")
            a(f"v_and_b32 v{mm}, 0xffff, v{mm}\nv_cmp_ne_u32 vcc, 0, v{mm}")
        a(f"s_cbranch_vccz L_h1x_{br}")
        a(f"s_add_u32 s{sRETRY}, s{sRETRY}, 1\ns_cmp_ge_u32 s{sRETRY}, 100000\ns_cbranch_scc1 L_h1x_{br}")
        for p in range(NH): self.emit(h1load(p))
        a(f"s_waitcnt vmcnt(0)\ns_branch L_h1_{br}")
        a(f"L_h1x_{br}:")
        if self.stamps: a(f"s_mov_b32 s{sST+15}, s{sRETRY}")
        if B:
            for i in range(4): a(f"v_permlane32_swap_b32 v{S+i}, v{S+4+i}")
            for i in range(4): a(f"v_add_f32 v{S+i}, v{S+i}, v{S+4+i}")
            a(f"v_cvt_pk_bf16_f32 v{G0}, v{S}, v{S+1}\nv_cvt_pk_bf16_f32 v{G0+1}, v{S+2}, v{S+3}")
        else:
            a(f"v_cvt_pk_bf16_f32 v{G0}, v{G0}, v{G0+1}\nv_cvt_pk_bf16_f32 v{G0+1}, v{G0+2}, v{G0+3}")
            a(f"v_cndmask_b32_e64 v{G0}, v{G0}, 0, s[{sSV}:{sSV+1}]\nv_cndmask_b32_e64 v{G0+1}, v{G0+1}, 0, s[{sSV}:{sSV+1}]")
        a(f"ds_write_b64 v{vKW}, {vr(G0,2)}")
        if not B: a(f"L_nored{br}:")
        a("s_waitcnt vmcnt(7)")
        a(f"v_cmp_ne_u32 vcc, s{sXCC}, v{vE}")
        a(f"s_cmp_eq_u64 vcc, 0\ns_cselect_b32 s{sFAST}, {1 if o['fast'] else 0}, 0")
        a("s_waitcnt lgkmcnt(0)\ns_barrier")
        self.stamp()
        nu = 4 if B else 2
        KA = vK
        for u in range(nu): a(f"ds_read_b128 {vr(KA+4*u,4)}, v{vKR} offset:{32*u}")
        N = vQ
        sOS, sOM = sXB, sWB
        a(f"s_lshr_b32 s{sT0}, s{sWV}, 2\ns_lshl_b32 s{sT0}, s{sT0}, 4\ns_and_b32 s{sT1}, s{sWV}, 3\ns_add_u32 s{sT0}, s{sT0}, s{sT1}\ns_lshl_b32 s{sT0}, s{sT0}, 11")
        a(f"s_add_u32 s{sOM}, s{sT0}, {OIM}")
        a(f"s_lshr_b32 s{sT1}, s{sRO}, 2\ns_lshl_b32 s{sT1}, s{sT1}, 16\ns_add_u32 s{sOS}, s{sT0}, s{sT1}\ns_add_u32 s{sOS}, s{sOS}, s{sOB}")
        vCK, vOR = vT+4, vT+5
        a(f"v_add_u32 v{vCK}, s{sOM}, v{vL16}")
        for u in range(nu):
            a(f"s_waitcnt lgkmcnt({nu-1-u})")
            a(f"v_mfma_f32_32x32x16_bf16 {vr(N,16)}, {vr(KA+4*u,4)}, {vr(vWF+4*u,4)}, {'0' if u == 0 else vr(N,16)}")
        a(f"s_lshr_b32 s{sT0}, s{sWV}, 2\ns_lshl_b32 s{sT0}, s{sT0}, 15\ns_add_u32 s{sT0}, s{sT0}, {OIM}\nv_add_u32 v{vOR}, s{sT0}, v{vL16}")
        a(f"v_mov_b32 v{t2}, s{sTAGHI}")
        if B: a(f"v_add_f32 v{t0}, v{N+7}, v{vS}")
        else: a(f"v_add_f32 v{t0}, s{sEPS}, v{N+7}")
        a(f"v_rcp_f32 v{t0}, v{t0}")
        OP = vV
        for p in range(8):
            a(f"v_mul_f32 v{N+2*p}, v{t0}, v{N+2*p}")
            if p % 4 != 3: a(f"v_mul_f32 v{N+2*p+1}, v{t0}, v{N+2*p+1}")
            a(f"v_cvt_pk_bf16_f32 v{OP+p}, v{N+2*p}, v{N+2*p+1}")
        a(f"v_and_or_b32 v{OP+3}, v{OP+3}, s{sM16}, v{t2}\nv_and_or_b32 v{OP+7}, v{OP+7}, s{sM16}, v{t2}")
        a(f"s_cmp_eq_u32 s{sFAST}, 1\ns_cbranch_scc0 L_slow{br}")
        a(f"buffer_store_dwordx4 {vr(OP,4)}, v{vL16}, s[{sWS}:{sWS+3}], s{sOW} offen")
        a(f"buffer_store_dwordx4 {vr(OP+4,4)}, v{vL16}, s[{sWS}:{sWS+3}], s{sOW} offen offset:1024")
        a(f"s_branch L_pub{br}\nL_slow{br}:")
        a(f"buffer_store_dwordx4 {vr(OP,4)}, v{vL16}, s[{sWS}:{sWS+3}], s{sOW} offen sc1")
        a(f"buffer_store_dwordx4 {vr(OP+4,4)}, v{vL16}, s[{sWS}:{sWS+3}], s{sOW} offen offset:1024 sc1")
        a(f"L_pub{br}:")
        a("s_waitcnt vmcnt(2)\ns_barrier")
        for hh in range(8, 11): self.emit(wofr(hh))
        a("s_waitcnt vmcnt(0)")
        self.stamp()
        def odma(q):
            a(f"s_add_u32 m0, s{sOM}, {q*8192}\ns_add_u32 s{sT0}, s{sOS}, {q*8192}")
            a(f"buffer_load_dwordx4 v{vL16}, s[{sWS}:{sWS+3}], s{sT0} offen sc1 lds")
            a(f"buffer_load_dwordx4 v{vL16}, s[{sWS}:{sWS+3}], s{sT0} offen offset:1024 sc1 lds")
        for q in range(4): odma(q)
        for hh in range(11, 16):
            self.emit(["s_waitcnt lgkmcnt(8)"] + womask(hh-3) + wofr(hh))
        self.emit(["s_waitcnt lgkmcnt(0)"] + womask(13) + womask(14) + womask(15))
        ACC = vK
        OF = [vU, vU+4, vU+8, vU+12]
        lq = Q("lgkmcnt")
        def chk_issue(q):
            a(f"s_waitcnt vmcnt({6-2*q})")
            a(f"ds_read_b32 v{t0}, v{vCK} offset:{q*8192+12}\nds_read_b32 v{t1}, v{vCK} offset:{q*8192+1024+12}")
            lq.issue(f"k{q}"); lq.issue(f"k{q}")
        def chk_test(q):
            a(lq.wait(f"k{q}"))
            a(f"L_h2_{br}_{q}:")
            a(f"v_xor_b32 v{t0}, s{sTAGHI}, v{t0}\nv_xor_b32 v{t1}, s{sTAGHI}, v{t1}\nv_or_b32 v{t0}, v{t0}, v{t1}")
            a(f"v_cmp_lt_u32 vcc, s{sM16}, v{t0}")
            a(f"s_cbranch_vccz L_h2x_{br}_{q}")
            a(f"s_add_u32 s{sRETRY}, s{sRETRY}, 1\ns_cmp_ge_u32 s{sRETRY}, 100000\ns_cbranch_scc1 L_h2x_{br}_{q}")
            odma(q)
            a(f"s_waitcnt vmcnt(0)")
            a(f"ds_read_b32 v{t0}, v{vCK} offset:{q*8192+12}\nds_read_b32 v{t1}, v{vCK} offset:{q*8192+1024+12}")
            a(f"s_waitcnt lgkmcnt(0)\ns_branch L_h2_{br}_{q}")
            a(f"L_h2x_{br}_{q}:")
            a("s_barrier")
        def ofr(ks):
            a(f"ds_read_b128 {vr(OF[ks%4],4)}, v{vOR} offset:{ks*1024}"); lq.issue(f"o{ks}")
        a(f"s_mov_b32 s{sRETRY}, 0")
        chk_issue(0); chk_test(0)
        self.stamp()
        for ks in range(3): ofr(ks)
        for ks in range(32):
            if ks % 8 == 2 and ks < 24: chk_issue(ks // 8 + 1)
            if ks % 8 == 5 and ks < 24: chk_test(ks // 8 + 1)
            if ks + 3 < 32: ofr(ks + 3)
            a(lq.wait(f"o{ks}"))
            a(f"v_mfma_f32_32x32x16_bf16 {vr(ACC,16)}, {vr(vXF+4*ks,4)}, {vr(OF[ks%4],4)}, {'0' if ks == 0 else vr(ACC,16)}")
        if self.stamps: a(f"s_mov_b32 s{sST+14}, s{sRETRY}")
        self.stamp()
        a(f"s_or_b32 s{sT0}, s{sBI}, s{sWV}\ns_cmp_eq_u32 s{sT0}, 0\ns_cbranch_scc0 L_noe{br}")
        a(f"s_or_b32 s{sT0}, s{sTAG}, s{sTAGHI}\nv_mov_b32 v{t0}, s{sT0}\nv_mov_b32 v{t1}, {E_OFF + br*256}")
        a(f"buffer_store_dword v{t0}, v{t1}, s[{sWS}:{sWS+3}], 0 offen sc1")
        a(f"L_noe{br}:")
        a(f"s_add_u32 s{sT1}, s{sOUTB}, {32*1792}")
        for g in range(4):
            a(f"v_cvt_pk_bf16_f32 v{vV+2*g}, v{ACC+4*g}, v{ACC+4*g+1}\nv_cvt_pk_bf16_f32 v{vV+2*g+1}, v{ACC+4*g+2}, v{ACC+4*g+3}")
            a(f"ds_write_b64 v{vSTG}, {vr(vV+2*g,2)} offset:{16*g}")
        a("s_waitcnt lgkmcnt(0)\ns_barrier")
        a(f"ds_read_b128 {vr(vQ,4)}, v{vOL}")
        a(f"ds_read_b128 {vr(vQ+4,4)}, v{vOL} offset:{32*OUTP}")
        a("s_waitcnt lgkmcnt(1)")
        a(f"buffer_store_dwordx4 {vr(vQ,4)}, v{vOG}, s[{sOUT}:{sOUT+3}], s{sOUTB} offen {o['outf']}")
        a("s_waitcnt lgkmcnt(0)")
        a(f"buffer_store_dwordx4 {vr(vQ+4,4)}, v{vOG}, s[{sOUT}:{sOUT+3}], s{sT1} offen {o['outf']}")
        if self.stamps:
            a("s_waitcnt vmcnt(0)")
            self.stamp()
            a(f"s_cmp_eq_u32 s{sWV}, 0\ns_cbranch_scc0 L_end")
            if self.amp:
                i, j, k = self.amp
                a(f"s_sub_u32 s{sT0}, s{sST+j}, s{sST+i}\ns_mul_i32 s{sT0}, s{sT0}, {k}\ns_add_u32 s{sT0}, s{sT0}, s{sST+self.ns-1}")
                a(f"L_amp{br}:\ns_memrealtime s[{sSV}:{sSV+1}]\ns_waitcnt lgkmcnt(0)\ns_sub_u32 s{sT1}, s{sSV}, s{sT0}\ns_cmp_lt_i32 s{sT1}, 0\ns_cbranch_scc1 L_amp{br}\ns_endpgm")
            a(f"s_mov_b64 exec, 1\ns_lshl_b32 s{sT0}, s2, 6\ns_add_u32 s{sT0}, s{sT0}, {S_OFF}\nv_mov_b32 v{t1}, 0")
            for i in list(range(self.ns)) + [12, 14, 15]:
                a(f"v_mov_b32 v{t0}, s{sST+i}\nbuffer_store_dword v{t0}, v{t1}, s[{sWS}:{sWS+3}], s{sT0} offen offset:{4*(i if i < 13 else i-1)}")
            a(f"v_mov_b32 v{t0}, s{sFAST}\nbuffer_store_dword v{t0}, v{t1}, s[{sWS}:{sWS+3}], s{sT0} offen offset:60")
        a("s_endpgm")

    def build(self):
        a = self.a
        self.prologue()
        self.branch(1)
        a("L_A:")
        self.branch(0)
        a("L_end:\ns_endpgm")
        body = a.finish()
        src = open(f"cdna_kernels/{NAME}.s.ref").read().split("\n")
        hdr = [l for l in src if l.startswith("; ") and "@launch" not in l and ("offset" in l or "Kernarg" in l)]
        out = "\n".join(hdr) + "\n"
        out += f"; @launch grid=(256,1,1) block=(512,1,1) lds={LDS_BYTES}\n"
        out += f'.amdgcn_target "amdgcn-amd-amdhsa--gfx950"\n.text\n.globl {KN}\n.p2align 8\n.type {KN},@function\n{KN}:\n'
        out += body
        out += f'''.section .rodata,"a"
.p2align 6
.amdhsa_kernel {KN}
  .amdhsa_next_free_vgpr 256
  .amdhsa_next_free_sgpr 102
  .amdhsa_accum_offset 256
  .amdhsa_group_segment_fixed_size 0
  .amdhsa_kernarg_size 80
  .amdhsa_user_sgpr_count 2
  .amdhsa_user_sgpr_kernarg_segment_ptr 1
  .amdhsa_system_sgpr_workgroup_id_x 1
.end_amdhsa_kernel
'''
        return out

if __name__ == "__main__":
    open("k4.s", "w").write(G(False).build())
    open("k4_st.s", "w").write(G(True, xst='c0').build())
    open("k4_q_st.s", "w").write(G(True, xst='qend').build())
    open("k4_p_st.s", "w").write(G(True, xst='pub').build())
    open("k4_s2_st.s", "w").write(G(True, S2=True, xst='kfeat').build())
    open("k4_s2q_st.s", "w").write(G(True, S2=True, xst='qend').build())
```
